```python
import torch

def _softmax(x, axis=-1):
    return torch.softmax(x, dim=axis)
def _gelu(x):
    return torch.nn.functional.gelu(x, approximate="tanh")
def _silu(x):
    return torch.nn.functional.silu(x)
def _sigmoid(x):
    return torch.sigmoid(x)
def _layernorm(x, axis=-1, eps=1e-5):
    m = x.mean(dim=axis, keepdim=True)
    v = x.var(dim=axis, keepdim=True, unbiased=False)
    return (x - m) / torch.sqrt(v + eps)
def _scatter_add(tgt, idx, src, axis=0):
    return tgt.clone().index_add_(axis, idx, src)
def _segment_sum(src, seg, n):
    out = torch.zeros((n,) + src.shape[1:], dtype=src.dtype)
    return out.index_add_(0, seg, src)
def _pad(x, pw):
    flat = tuple(v for pair in reversed(pw) for v in pair)
    return torch.nn.functional.pad(x, flat)

kernel_name = 'gated_mix__sliding_block_cached__mixer_channel_mlp__decode'

def setup_inputs():

    _w = (lambda a: (lambda t: t.to(torch.bfloat16) if t.is_floating_point() else t)(torch.as_tensor(a)))
    def _A_setup():
        B, Sq, D = 4, 1, 512
        Hq, Hkv, Sk, Dh = 32, 8, 4096, 128
        assert Hq % Hkv == 0, (Hq, Hkv)
        return {
            "x": _w((lambda *s: torch.randn(*s, dtype=torch.bfloat16) * 0.05)(B, Sq, D)),
            "k_cache": _w((lambda *s: torch.randn(*s, dtype=torch.bfloat16) * 6.4)(B, Hkv, Sk, Dh)),
            "v_cache": _w((lambda *s: torch.randn(*s, dtype=torch.bfloat16) * 0.4)(B, Hkv, Sk, Dh)),
            "wq": _w((lambda *s: torch.randn(*s, dtype=torch.bfloat16) * 6.4)(D, Hq * Dh) * (D ** -0.5)),
            "wo": _w((lambda *s: torch.randn(*s, dtype=torch.bfloat16) * 0.4)(Hq * Dh, D) * ((Hq * Dh) ** -0.5)),
        }
    _A_in = _A_setup()

    def _B_setup():
        B, S, D, F = 4, 1, 512, 1792
        return {
            "x": _w((lambda *s: torch.randn(*s, dtype=torch.bfloat16) * 0.05)(B, S, D)),
            "w1": _w((lambda *s: torch.randn(*s, dtype=torch.bfloat16) * 0.8)(D, F) * (D ** -0.5)),
            "b1": _w((lambda *s: torch.randn(*s, dtype=torch.bfloat16) * 0.8)(F)),
            "w2": _w((lambda *s: torch.randn(*s, dtype=torch.bfloat16) * 0.05)(F, D) * (F ** -0.5)),
            "b2": _w((lambda *s: torch.randn(*s, dtype=torch.bfloat16) * 0.05)(D)),
        }
    _B_in = _B_setup()

    return {
        "A_x": _A_in["x"],
        "A_k_cache": _A_in["k_cache"],
        "A_v_cache": _A_in["v_cache"],
        "A_wq": _A_in["wq"],
        "A_wo": _A_in["wo"],
        "B_x": _B_in["x"],
        "B_w1": _B_in["w1"],
        "B_b1": _B_in["b1"],
        "B_w2": _B_in["w2"],
        "B_b2": _B_in["b2"],
        "gate_w": _w((lambda *s: torch.randn(*s, dtype=torch.bfloat16) * 0.05)(512) * 16.0),
    }

def reference(A_x, A_k_cache, A_v_cache, A_wq, A_wo, B_x, B_w1, B_b1, B_w2, B_b2, gate_w):
    def _A_ref(x, k_cache, v_cache, wq, wo):
        B, Sq, D = x.shape
        Hq, Dh = 32, 128
        Hkv, Sk = k_cache.shape[1], k_cache.shape[2]
        W = min(4096, max(256, Sk // 4))
        rep = Hq // Hkv
        q = (lambda x, *d: x.permute(*d))((x @ wq).reshape(B, Sq, Hq, Dh), 0, 2, 1, 3)
        k = (lambda x, n, axis: torch.repeat_interleave(x, n, dim=axis))(k_cache[:, :, Sk - W:, :], rep, axis=1)
        v = (lambda x, n, axis: torch.repeat_interleave(x, n, dim=axis))(v_cache[:, :, Sk - W:, :], rep, axis=1)
        scores = torch.einsum("bhqd,bhkd->bhqk", q, k) * (Dh ** -0.5)
        p = _softmax(scores, axis=-1)
        o = torch.einsum("bhqk,bhkd->bhqd", p, v)
        return (lambda x, *d: x.permute(*d))(o, 0, 2, 1, 3).reshape(B, Sq, Hq * Dh) @ wo

    def _B_ref(x, w1, b1, w2, b2):
        y = _layernorm(x, axis=-1)
        h = _gelu(torch.einsum("bsd,df->bsf", y, w1) + b1)
        return torch.einsum("bsf,fd->bsd", h, w2) + b2

    x = A_x
    g = _sigmoid((x * gate_w).sum(-1, keepdims=True))
    a = _A_ref(x, A_k_cache, A_v_cache, A_wq, A_wo)
    b = _B_ref(x, B_w1, B_b1, B_w2, B_b2)
    return g * a + (1 - g) * b
```

```python
import sys

NAME = "gated_mix__sliding_block_cached__mixer_channel_mlp__decode"
HEADER = open("cdna_kernels/%s.s.ref" % NAME).read().split("; Override launch geometry")[0]

LDS_BYTES = 96 * 1024
WQ = 0x0000; W1 = 0x4000; VV = 0x6000
QRED = 0xE000; HRED = 0xE400; OST = 0xE800; OA = 0xE900; OBUF = 0xF000
QB = 0x10000; HB = 0x20000; SB = 0x40000; OB = 0x100000; PB = 0x200000; WS_END = 0x400000
LIMIT = 20000

out = []
def e(s=""):
    out.append("    " + s if s and not s.endswith(":") else s)
def nop(n):
    while n > 0:
        k = min(n, 16)
        e("s_nop %d" % (k - 1)); n -= k
def vr(a, n): return "v[%d:%d]" % (a, a + n - 1)
def sr(a, n): return "s[%d:%d]" % (a, a + n - 1)

sKVH, sJ, sB, sS, sW, sRB, sCB, sT, sCNT = 4, 5, 6, 7, 8, 9, 10, 11, 12
SX, SK, SV, SWQ, SWO, SW1, SB1, SW2, SB2, SGW, SOUT, SWS = 44, 48, 52, 56, 60, 64, 68, 72, 76, 80, 84, 88
sG = 92
vLANE, vG, vN, vB4 = 1, 2, 3, 4
XF, XA, GW, KF, QP, QF, BF, OACC = 16, 32, 48, 64, 96, 128, 144, 160
T0 = 192

def rbf(dst, src, tmp):
    e("v_cvt_pk_bf16_f32 v%d, v%d, v%d" % (tmp, src, src))
    e("v_lshlrev_b32 v%d, 16, v%d" % (dst, tmp))

def allreduce_rows(op, v, t):
    for sw in ("v_permlane16_swap_b32", "v_permlane32_swap_b32"):
        e("v_mov_b32 v%d, v%d" % (t, v))
        nop(2)
        e("%s v%d, v%d" % (sw, v, t))
        e("%s v%d, v%d, v%d" % (op, v, v, t))

def allreduce_ror(op, v, t):
    for r in (4, 8):
        nop(2)
        e("%s_dpp v%d, v%d, v%d row_ror:%d row_mask:0xf bank_mask:0xf" % (op, t, v, v, r))
        e("v_mov_b32 v%d, v%d" % (v, t))

def allreduce_row16(op, v, t):
    for m in ("quad_perm:[1,0,3,2]", "quad_perm:[2,3,0,1]", "row_half_mirror", "row_mirror"):
        nop(2)
        e("%s_dpp v%d, v%d, v%d %s row_mask:0xf bank_mask:0xf" % (op, t, v, v, m))
        e("v_mov_b32 v%d, v%d" % (v, t))

def tagcheck(tags, vmin, vmax, label, done):
    t = list(tags)
    for op, acc in (("v_min3_u32", vmin), ("v_max3_u32", vmax)):
        r = list(t)
        e("%s v%d, v%d, v%d, v%d" % (op, acc, r[0], r[1], r[2])); r = r[3:]
        while len(r) >= 2:
            e("%s v%d, v%d, v%d, v%d" % (op, acc, acc, r[0], r[1])); r = r[2:]
        if r:
            e("%s v%d, v%d, v%d" % (op.replace("3_", "_"), acc, acc, r[0]))
    e("v_xor_b32 v%d, s%d, v%d" % (vmin, sT, vmin))
    e("v_xor_b32 v%d, s%d, v%d" % (vmax, sT, vmax))
    e("v_or_b32 v%d, v%d, v%d" % (vmin, vmin, vmax))
    e("v_cmp_ne_u32 vcc, 0, v%d" % vmin)
    e("s_add_u32 s%d, s%d, 1" % (sCNT, sCNT))
    e("s_cmp_lt_u32 s%d, %d" % (sCNT, LIMIT))
    e("s_cbranch_scc0 %s" % done)
    e("s_cbranch_vccnz %s" % label)
    e("%s:" % done)

def dma(srd, vaddr, soff, ldsaddr_s, flags=""):
    e("s_mov_b32 m0, s%d" % ldsaddr_s)
    e("s_nop 0")
    e("buffer_load_dwordx4 v%d, %s, s%d offen lds%s" % (vaddr, sr(srd, 4), soff, flags))

def body():
    e("s_cmp_ge_u32 s2, 256")
    e("s_cbranch_scc1 L_end")
    e("s_load_dwordx16 s[16:31], s[0:1], 0")
    e("s_load_dwordx8 s[32:39], s[0:1], 64")
    e("s_load_dwordx4 s[40:43], s[0:1], 96")
    e("v_and_b32 v%d, 63, v0" % vLANE)
    e("v_lshrrev_b32 v5, 6, v0")
    e("v_lshrrev_b32 v%d, 4, v%d" % (vG, vLANE))
    e("v_and_b32 v%d, 15, v0" % vN)
    e("v_and_b32 v%d, 3, v0" % vB4)
    e("v_readfirstlane_b32 s%d, v5" % sW)
    e("s_and_b32 s%d, s2, 7" % sKVH)
    e("s_lshr_b32 s%d, s2, 3" % sJ)
    e("s_lshr_b32 s%d, s%d, 3" % (sB, sJ))
    e("s_and_b32 s%d, s%d, 7" % (sS, sJ))
    e("s_lshl_b32 s%d, s%d, 3" % (sRB, sKVH))
    e("s_add_u32 s%d, s%d, s%d" % (sRB, sRB, sS))
    e("s_mov_b32 s%d, s%d" % (sCB, sB))
    e("s_waitcnt lgkmcnt(0)")
    e("s_load_dword s%d, s[42:43], 0" % sT)
    srds = [(SX, 16, 4096), (SK, 18, 33554432), (SV, 20, 33554432), (SWQ, 22, 4194304), (SWO, 24, 4194304),
            (SW1, 28, 1835008), (SB1, 30, 3584), (SW2, 32, 1835008), (SB2, 34, 1024), (SGW, 36, 1024),
            (SOUT, 38, 4096), (SWS, 42, WS_END)]
    for d, p, n in srds:
        e("s_mov_b32 s%d, s%d" % (d, p))
        e("s_and_b32 s%d, s%d, 0xffff" % (d + 1, p + 1))
        e("s_mov_b32 s%d, %d" % (d + 2, n))
        e("s_mov_b32 s%d, 0x00020000" % (d + 3))
    e("s_lshl_b32 s13, s%d, 8" % sW)
    e("v_lshlrev_b32 v5, 10, v%d" % vB4)
    e("v_lshl_add_u32 v5, v%d, 4, v5" % vG)
    for kk in range(4):
        e("buffer_load_dwordx4 %s, v5, %s, s13 offen offset:%d" % (vr(XF + 4 * kk, 4), sr(SX, 4), 64 * kk))
    e("v_lshrrev_b32 v6, 2, v%d" % vLANE)
    e("v_lshlrev_b32 v6, 6, v6")
    e("v_lshl_add_u32 v7, v%d, 10, v6" % vB4)
    for k in range(4):
        e("buffer_load_dwordx4 %s, v7, %s, 0 offen offset:%d" % (vr(XA + 4 * k, 4), sr(SX, 4), 16 * k))
    for k in range(4):
        e("buffer_load_dwordx4 %s, v6, %s, 0 offen offset:%d" % (vr(GW + 4 * k, 4), sr(SGW, 4), 16 * k))
    e("s_cmp_ge_u32 s%d, 28" % sJ)
    e("s_cbranch_scc1 L_now1")
    e("s_mul_i32 s14, s%d, 28" % sKVH)
    e("s_add_u32 s14, s14, s%d" % sJ)
    e("v_and_b32 v5, 3, v%d" % vLANE)
    e("v_lshlrev_b32 v5, 2, v5")
    e("s_lshl_b32 s13, s14, 4")
    e("buffer_load_dword v%d, v5, %s, s13 offen" % (OACC, sr(SB1, 4)))
    e("s_mov_b32 s15, 3584")
    e("v_mul_lo_u32 v5, v%d, s15" % vLANE)
    e("s_mul_i32 s16, s%d, %d" % (sW, 128 * 3584))
    e("s_lshl_b32 s17, s14, 4")
    e("s_add_u32 s16, s16, s17")
    e("s_lshl_b32 s18, s%d, 11" % sW)
    e("s_add_u32 s18, s18, %d" % W1)
    for t in range(2):
        dma(SW1, 5, 16, 18)
        if t == 0:
            e("s_add_u32 s16, s16, %d" % (64 * 3584))
            e("s_add_u32 s18, s18, 1024")
    e("L_now1:")
    e("v_lshrrev_b32 v5, 1, v%d" % vLANE)
    e("v_lshlrev_b32 v5, 13, v5")
    e("v_and_b32 v6, 1, v%d" % vLANE)
    e("v_lshl_add_u32 v5, v6, 4, v5")
    e("s_lshl_b32 s16, s%d, 20" % sW)
    e("s_lshl_b32 s17, s%d, 10" % sKVH)
    e("s_add_u32 s16, s16, s17")
    e("s_lshl_b32 s17, s%d, 5" % sJ)
    e("s_add_u32 s16, s16, s17")
    e("s_lshl_b32 s18, s%d, 12" % sW)
    e("s_add_u32 s18, s18, %d" % WQ)
    for t in range(4):
        dma(SWQ, 5, 16, 18)
        if t < 3:
            e("s_add_u32 s16, s16, %d" % (32 * 8192))
            e("s_add_u32 s18, s18, 1024")
    e("s_lshl_b32 s16, s%d, 3" % sB)
    e("s_add_u32 s16, s16, s%d" % sKVH)
    e("s_lshl_b32 s16, s16, 12")
    e("s_lshl_b32 s17, s%d, 7" % sS)
    e("s_add_u32 s16, s16, s17")
    e("s_lshl_b32 s17, s%d, 5" % sW)
    e("s_add_u32 s16, s16, s17")
    e("s_add_u32 s16, s16, 3072")
    e("s_lshl_b32 s16, s16, 8")
    e("s_add_u32 s17, s16, 4096")
    e("v_lshlrev_b32 v5, 8, v%d" % vN)
    e("v_lshl_add_u32 v5, v%d, 4, v5" % vG)
    for t in range(2):
        for kk in range(4):
            e("buffer_load_dwordx4 %s, v5, %s, s%d offen offset:%d" % (vr(KF + 16 * t + 4 * kk, 4), sr(SK, 4), 16 + t, 64 * kk))
    e("v_lshlrev_b32 v7, 1, v%d" % vG)
    e("v_xor_b32 v5, v%d, v7" % vN)
    e("v_xor_b32 v6, 8, v5")
    e("v_lshlrev_b32 v5, 4, v5")
    e("v_lshlrev_b32 v6, 4, v6")
    e("v_lshl_add_u32 v5, v%d, 8, v5" % vG)
    e("v_lshl_add_u32 v6, v%d, 8, v6" % vG)
    e("s_lshl_b32 s18, s%d, 13" % sW)
    e("s_add_u32 s18, s18, %d" % VV)
    for t in range(8):
        dma(SV, 5 + (t & 1), 16, 18)
        if t < 7:
            e("s_add_u32 s16, s16, 1024")
            e("s_add_u32 s18, s18, 1024")
    e("s_waitcnt lgkmcnt(0)")
    e("s_add_u32 s%d, s%d, 1" % (sT, sT))
    e("v_lshrrev_b32 v8, 2, v%d" % vLANE)
    e("v_and_b32 v8, 3, v8")
    e("v_lshl_add_u32 v9, v%d, 3, v8" % vG)
    e("s_lshl_b32 s13, s%d, 12" % sW)
    e("v_lshlrev_b32 v10, 5, v9")
    e("v_lshl_add_u32 v10, v%d, 3, v10" % vB4)
    e("v_add_u32 v10, s13, v10")
    e("s_waitcnt vmcnt(16)")
    for kk in range(4):
        e("ds_read_b64_tr_b16 %s, v10 offset:%d" % (vr(BF + 4 * kk, 2), WQ + kk * 1024))
        e("ds_read_b64_tr_b16 %s, v10 offset:%d" % (vr(BF + 4 * kk + 2, 2), WQ + kk * 1024 + 128))
    e("s_waitcnt lgkmcnt(0)")
    for kk in range(4):
        e("v_mfma_f32_16x16x32_bf16 %s, %s, %s, %s" % (vr(T0, 4), vr(XF + 4 * kk, 4), vr(BF + 4 * kk, 4), "0" if kk == 0 else vr(T0, 4)))
    e("s_lshl_b32 s13, s%d, 8" % sW)
    e("v_lshlrev_b32 v11, 4, v%d" % vN)
    e("v_add_u32 v11, s13, v11")
    nop(8)
    e("ds_write_b128 v11, %s offset:%d" % (vr(T0, 4), QRED))
    e("s_waitcnt lgkmcnt(0)")
    e("s_barrier")
    e("s_cmp_lg_u32 s%d, 0" % sW)
    e("s_cbranch_scc1 L_qdone")
    e("v_and_b32 v11, 7, v%d" % vLANE)
    e("v_bfe_u32 v12, v%d, 3, 2" % vLANE)
    e("v_lshlrev_b32 v13, 5, v11")
    e("v_lshl_add_u32 v13, v12, 2, v13")
    e("v_add_u32 v13, %d, v13" % QRED)
    for w in range(4):
        e("ds_read2_b32 %s, v13 offset0:%d offset1:%d" % (vr(T0 + 2 * w, 2), w * 64, w * 64 + 4))
    e("s_lshl_b32 s13, s%d, 11" % sKVH)
    e("s_lshl_b32 s15, s%d, 6" % sJ)
    e("s_add_u32 s13, s13, s15")
    e("s_add_u32 s13, s13, %d" % QB)
    e("v_lshlrev_b32 v14, 14, v12")
    e("v_lshl_add_u32 v14, v11, 3, v14")
    e("s_waitcnt lgkmcnt(0)")
    e("v_add_f32 v%d, v%d, v%d" % (T0, T0, T0 + 2))
    e("v_add_f32 v%d, v%d, v%d" % (T0 + 1, T0 + 1, T0 + 3))
    e("v_add_f32 v%d, v%d, v%d" % (T0 + 4, T0 + 4, T0 + 6))
    e("v_add_f32 v%d, v%d, v%d" % (T0 + 5, T0 + 5, T0 + 7))
    e("v_add_f32 v%d, v%d, v%d" % (T0, T0, T0 + 4))
    e("v_add_f32 v%d, v%d, v%d" % (T0 + 1, T0 + 1, T0 + 5))
    e("v_cvt_pk_bf16_f32 v%d, v%d, v%d" % (T0 + 8, T0, T0 + 1))
    e("v_mov_b32 v%d, s%d" % (T0 + 9, sT))
    e("buffer_store_dwordx2 %s, v14, %s, s13 offen sc1" % (vr(T0 + 8, 2), sr(SWS, 4)))
    e("L_qdone:")
    U = T0
    for k in range(16):
        e("v_lshlrev_b32 v%d, 16, v%d" % (U + 2 * k, XA + k))
        e("v_and_b32 v%d, 0xffff0000, v%d" % (U + 2 * k + 1, XA + k))
    e("v_mov_b32 v12, 0")
    e("v_mov_b32 v13, 0")
    for k in range(16):
        e("v_lshlrev_b32 v14, 16, v%d" % (GW + k))
        e("v_and_b32 v15, 0xffff0000, v%d" % (GW + k))
        e("v_mul_f32 v14, v14, v%d" % (U + 2 * k))
        e("v_mul_f32 v15, v15, v%d" % (U + 2 * k + 1))
        e("v_cvt_pk_bf16_f32 v14, v14, v15")
        e("v_and_b32 v15, 0xffff0000, v14")
        e("v_lshlrev_b32 v14, 16, v14")
        e("v_add_f32 v13, v13, v14")
        e("v_add_f32 v13, v13, v15")
        e("v_add_f32 v12, v12, v%d" % (U + 2 * k))
        e("v_add_f32 v12, v12, v%d" % (U + 2 * k + 1))
    for v in (12, 13):
        allreduce_ror("v_add_f32", v, 14)
        allreduce_rows("v_add_f32", v, 14)
    e("v_mul_f32 v12, 0x3b000000, v12")
    e("v_mov_b32 v11, 0")
    for k in range(32):
        e("v_sub_f32 v14, v%d, v12" % (U + k))
        e("v_fmac_f32 v11, v14, v14")
    allreduce_ror("v_add_f32", 11, 14)
    allreduce_rows("v_add_f32", 11, 14)
    e("v_mul_f32 v11, 0x3b000000, v11")
    rbf(12, 12, 14)
    rbf(11, 11, 14)
    e("v_add_f32 v11, 0x3727c5ac, v11")
    rbf(11, 11, 14)
    e("v_sqrt_f32 v11, v11")
    nop(1)
    rbf(11, 11, 14)
    e("v_rcp_f32 v10, v11")
    rbf(13, 13, 14)
    e("v_mul_f32 v13, 0xbfb8aa3b, v13")
    e("v_exp_f32 v13, v13")
    nop(1)
    e("v_add_f32 v13, 1.0, v13")
    e("v_rcp_f32 v13, v13")
    nop(1)
    rbf(13, 13, 14)
    nop(1)
    for b in range(4):
        e("v_readlane_b32 s%d, v13, %d" % (sG + b, b))
    e("s_cmp_ge_u32 s%d, 28" % sJ)
    e("s_cbranch_scc1 L_hdone")
    for k in range(16):
        x = XF + k
        e("v_lshlrev_b32 v14, 16, v%d" % x)
        e("v_and_b32 v15, 0xffff0000, v%d" % x)
        e("v_sub_f32 v14, v14, v12")
        e("v_sub_f32 v15, v15, v12")
        e("v_cvt_pk_bf16_f32 v14, v14, v15")
        e("v_and_b32 v15, 0xffff0000, v14")
        e("v_lshlrev_b32 v14, 16, v14")
        e("v_mul_f32 v6, v14, v10")
        e("v_mul_f32 v7, v15, v10")
        e("v_fma_f32 v14, -v6, v11, v14")
        e("v_fma_f32 v15, -v7, v11, v15")
        e("v_fma_f32 v6, v14, v10, v6")
        e("v_fma_f32 v7, v15, v10, v7")
        e("v_cvt_pk_bf16_f32 v%d, v6, v7" % x)
    e("v_lshrrev_b32 v8, 2, v%d" % vLANE)
    e("v_and_b32 v8, 3, v8")
    e("v_lshl_add_u32 v8, v%d, 3, v8" % vG)
    e("v_lshlrev_b32 v8, 4, v8")
    e("v_and_b32 v6, 1, v%d" % vLANE)
    e("v_lshl_add_u32 v8, v6, 3, v8")
    e("s_lshl_b32 s13, s%d, 11" % sW)
    e("v_add_u32 v8, s13, v8")
    for kk in range(4):
        e("ds_read_b64_tr_b16 %s, v8 offset:%d" % (vr(BF + 4 * kk, 2), W1 + kk * 512))
        e("ds_read_b64_tr_b16 %s, v8 offset:%d" % (vr(BF + 4 * kk + 2, 2), W1 + kk * 512 + 64))
    e("s_waitcnt lgkmcnt(0)")
    for kk in range(4):
        e("v_mfma_f32_16x16x32_bf16 %s, %s, %s, %s" % (vr(T0, 4), vr(XF + 4 * kk, 4), vr(BF + 4 * kk, 4), "0" if kk == 0 else vr(T0, 4)))
    e("s_lshl_b32 s13, s%d, 8" % sW)
    e("v_lshlrev_b32 v5, 4, v%d" % vN)
    e("v_add_u32 v5, s13, v5")
    nop(8)
    e("ds_write_b128 v5, %s offset:%d" % (vr(T0, 4), HRED))
    e("s_waitcnt lgkmcnt(0)")
    e("s_barrier")
    e("s_cmp_lg_u32 s%d, 1" % sW)
    e("s_cbranch_scc1 L_hdone")
    e("v_and_b32 v5, 3, v%d" % vLANE)
    e("v_bfe_u32 v6, v%d, 2, 2" % vLANE)
    e("v_lshlrev_b32 v7, 5, v5")
    e("v_lshl_add_u32 v7, v6, 2, v7")
    e("v_add_u32 v7, %d, v7" % HRED)
    for w in range(4):
        e("ds_read2_b32 %s, v7 offset0:%d offset1:%d" % (vr(T0 + 2 * w, 2), w * 64, w * 64 + 4))
    e("s_lshl_b32 s13, s14, 5")
    e("s_add_u32 s13, s13, %d" % HB)
    e("v_lshlrev_b32 v8, 13, v6")
    e("v_lshl_add_u32 v8, v5, 3, v8")
    e("s_waitcnt lgkmcnt(0)")
    e("v_add_f32 v%d, v%d, v%d" % (T0, T0, T0 + 2))
    e("v_add_f32 v%d, v%d, v%d" % (T0 + 1, T0 + 1, T0 + 3))
    e("v_add_f32 v%d, v%d, v%d" % (T0 + 4, T0 + 4, T0 + 6))
    e("v_add_f32 v%d, v%d, v%d" % (T0 + 5, T0 + 5, T0 + 7))
    e("v_add_f32 v%d, v%d, v%d" % (T0, T0, T0 + 4))
    e("v_add_f32 v%d, v%d, v%d" % (T0 + 1, T0 + 1, T0 + 5))
    e("v_cvt_pk_bf16_f32 v14, v%d, v%d" % (T0, T0 + 1))
    e("v_and_b32 v15, 0xffff0000, v14")
    e("v_lshlrev_b32 v14, 16, v14")
    e("v_lshlrev_b32 v6, 16, v%d" % OACC)
    e("v_and_b32 v7, 0xffff0000, v%d" % OACC)
    e("v_add_f32 v14, v14, v6")
    e("v_add_f32 v15, v15, v7")
    e("v_cvt_pk_bf16_f32 v14, v14, v15")
    e("v_and_b32 v15, 0xffff0000, v14")
    e("v_lshlrev_b32 v14, 16, v14")
    for x in (14, 15):
        e("v_mul_f32 v6, v%d, v%d" % (x, x))
        e("v_mul_f32 v6, 0x3d372713, v6")
        e("v_fma_f32 v6, v6, v%d, v%d" % (x, x))
        e("v_mul_f32 v6, 0x40135761, v6")
        e("v_exp_f32 v6, v6")
        nop(1)
        e("v_add_f32 v6, 1.0, v6")
        e("v_rcp_f32 v6, v6")
        nop(1)
        e("v_fma_f32 v%d, -v%d, v6, v%d" % (x, x, x))
    e("v_cvt_pk_bf16_f32 v%d, v14, v15" % (T0 + 8))
    e("v_mov_b32 v%d, s%d" % (T0 + 9, sT))
    e("buffer_store_dwordx2 %s, v8, %s, s13 offen sc1" % (vr(T0 + 8, 2), sr(SWS, 4)))
    e("L_hdone:")
    e("s_lshl_b32 s13, s%d, 3" % sB)
    e("s_add_u32 s13, s13, s%d" % sKVH)
    e("s_lshl_b32 s13, s13, 11")
    e("s_add_u32 s13, s13, %d" % QB)
    e("v_lshlrev_b32 v5, 9, v%d" % vB4)
    e("v_lshl_add_u32 v5, v%d, 5, v5" % vG)
    e("s_mov_b32 s%d, 0" % sCNT)
    e("L_p1:")
    for kk in range(4):
        for h in range(2):
            e("buffer_load_dwordx4 %s, v5, %s, s13 offen offset:%d sc1" % (vr(QP + 8 * kk + 4 * h, 4), sr(SWS, 4), kk * 128 + h * 16))
    e("s_waitcnt vmcnt(0)")
    tagcheck([QP + 2 * k + 1 for k in range(16)], 6, 7, "L_p1", "L_p1d")
    for k in range(16):
        e("v_mov_b32 v%d, v%d" % (QF + k, QP + 2 * k))
    e("v_lshrrev_b32 v5, 2, v%d" % vLANE)
    e("v_lshlrev_b32 v5, 10, v5")
    e("v_lshrrev_b32 v6, 5, v%d" % vLANE)
    e("v_lshlrev_b32 v6, 1, v6")
    e("v_xor_b32 v6, v%d, v6" % vB4)
    e("v_lshl_add_u32 v5, v6, 4, v5")
    e("s_lshl_b32 s15, s%d, 8" % sCB)
    e("s_lshl_b32 s16, s%d, 6" % sW)
    e("s_add_u32 s15, s15, s16")
    e("s_lshl_b32 s16, s%d, 16" % sRB)
    e("s_add_u32 s16, s16, s15")
    e("s_lshl_b32 s18, s%d, 12" % sW)
    e("s_add_u32 s18, s18, %d" % WQ)
    for t in range(4):
        dma(SWO, 5, 16, 18)
        if t < 3:
            e("s_add_u32 s16, s16, 16384")
            e("s_add_u32 s18, s18, 1024")
    e("s_mul_i32 s16, s%d, %d" % (sRB, 28 * 1024))
    e("s_add_u32 s16, s16, s15")
    e("s_lshl_b32 s18, s%d, 11" % sW)
    e("s_add_u32 s18, s18, %d" % W1)
    for t in range(2):
        dma(SW2, 5, 16, 18)
        if t < 1:
            e("s_add_u32 s16, s16, 16384")
            e("s_add_u32 s18, s18, 1024")
    S = T0
    for t in range(2):
        for kk in range(4):
            e("v_mfma_f32_16x16x32_bf16 %s, %s, %s, %s" % (vr(S + 4 * t, 4), vr(KF + 16 * t + 4 * kk, 4), vr(QF + 4 * kk, 4), "0" if kk == 0 else vr(S + 4 * t, 4)))
    e("v_lshrrev_b32 v8, 2, v%d" % vLANE)
    e("v_and_b32 v9, 7, v8")
    e("v_lshlrev_b32 v9, 5, v9")
    e("v_lshl_add_u32 v9, v8, 8, v9")
    e("v_lshl_add_u32 v9, v%d, 3, v9" % vB4)
    e("s_lshl_b32 s13, s%d, 13" % sW)
    e("s_add_u32 s13, s13, %d" % VV)
    e("v_add_u32 v9, s13, v9")
    nop(4)
    for k in range(0, 8, 2):
        e("v_cvt_pk_bf16_f32 v14, v%d, v%d" % (S + k, S + k + 1))
        e("v_and_b32 v15, 0xffff0000, v14")
        e("v_lshlrev_b32 v14, 16, v14")
        e("v_mul_f32 v14, 0x3db504f3, v14")
        e("v_mul_f32 v15, 0x3db504f3, v15")
        e("v_cvt_pk_bf16_f32 v14, v14, v15")
        e("v_and_b32 v15, 0xffff0000, v14")
        e("v_lshlrev_b32 v14, 16, v14")
        e("v_mul_f32 v%d, 0x3fb8aa3b, v14" % (S + k))
        e("v_mul_f32 v%d, 0x3fb8aa3b, v15" % (S + k + 1))
    e("v_max3_f32 v12, v%d, v%d, v%d" % (S, S + 1, S + 2))
    e("v_max3_f32 v12, v12, v%d, v%d" % (S + 3, S + 4))
    e("v_max3_f32 v12, v12, v%d, v%d" % (S + 5, S + 6))
    e("v_max_f32 v12, v12, v%d" % (S + 7))
    allreduce_rows("v_max_f32", 12, 14)
    e("v_mov_b32 v13, 0")
    for k in range(8):
        e("v_sub_f32 v%d, v%d, v12" % (S + k, S + k))
    for k in range(8):
        e("v_exp_f32 v%d, v%d" % (S + k, S + k))
    nop(1)
    for k in range(8):
        e("v_add_f32 v13, v13, v%d" % (S + k))
    P = T0 + 8
    for k in range(4):
        e("v_cvt_pk_bf16_f32 v%d, v%d, v%d" % (P + k, S + 2 * k, S + 2 * k + 1))
    allreduce_rows("v_add_f32", 13, 14)
    VA = T0 + 16
    for u in range(8):
        if u:
            e("v_xor_b32 v10, %d, v9" % (u << 5))
        else:
            e("v_mov_b32 v10, v9")
        e("ds_read_b64_tr_b16 %s, v10" % vr(VA + 4 * u, 2))
        e("ds_read_b64_tr_b16 %s, v10 offset:4096" % vr(VA + 4 * u + 2, 2))
    e("s_waitcnt lgkmcnt(0)")
    for u in range(8):
        e("v_mfma_f32_16x16x32_bf16 %s, %s, %s, 0" % (vr(OACC + 4 * u, 4), vr(VA + 4 * u, 4), vr(P, 4)))
    e("s_lshl_b32 s13, s%d, 11" % sW)
    e("s_add_u32 s13, s13, %d" % OBUF)
    e("v_lshlrev_b32 v5, 9, v%d" % vB4)
    e("v_lshl_add_u32 v5, v%d, 4, v5" % vG)
    e("v_add_u32 v5, s13, v5")
    e("s_lshl_b32 s13, s%d, 5" % sW)
    e("s_add_u32 s13, s13, %d" % OST)
    e("v_lshlrev_b32 v6, 3, v%d" % vB4)
    e("v_add_u32 v6, s13, v6")
    e("ds_write_b64 v6, v[12:13]")
    nop(8)
    for u in range(8):
        e("ds_write_b128 v5, %s offset:%d" % (vr(OACC + 4 * u, 4), 64 * u))
    e("s_waitcnt lgkmcnt(0)")
    e("s_barrier")
    e("s_lshl_b32 s13, s%d, 9" % sW)
    e("s_add_u32 s13, s13, %d" % OBUF)
    e("v_lshlrev_b32 v5, 3, v%d" % vLANE)
    e("v_add_u32 v5, s13, v5")
    e("s_lshl_b32 s13, s%d, 3" % sW)
    e("s_add_u32 s13, s13, %d" % OST)
    e("v_mov_b32 v6, s13")
    for w in range(4):
        e("ds_read_b64 %s, v5 offset:%d" % (vr(T0 + 2 * w, 2), 2048 * w))
        e("ds_read_b64 %s, v6 offset:%d" % (vr(T0 + 8 + 2 * w, 2), 32 * w))
    e("s_lshl_b32 s13, s%d, 3" % sB)
    e("s_add_u32 s13, s13, s%d" % sKVH)
    e("s_lshl_b32 s15, s13, 3")
    e("s_add_u32 s15, s15, s%d" % sS)
    e("s_lshl_b32 s15, s15, 12")
    e("s_lshl_b32 s16, s%d, 10" % sW)
    e("s_add_u32 s15, s15, s16")
    e("s_add_u32 s15, s15, %d" % OB)
    e("s_lshl_b32 s16, s13, 2")
    e("s_add_u32 s16, s16, s%d" % sW)
    e("s_lshl_b32 s16, s16, 3")
    e("s_add_u32 s16, s16, s%d" % sS)
    e("s_lshl_b32 s16, s16, 4")
    e("s_add_u32 s16, s16, %d" % SB)
    e("v_lshlrev_b32 v7, 4, v%d" % vLANE)
    e("v_mov_b32 v8, 0")
    e("s_waitcnt lgkmcnt(0)")
    M = T0 + 8
    e("v_max3_f32 v12, v%d, v%d, v%d" % (M, M + 2, M + 4))
    e("v_max_f32 v12, v12, v%d" % (M + 6))
    for w in range(4):
        e("v_sub_f32 v%d, v%d, v12" % (M + 2 * w, M + 2 * w))
    for w in range(4):
        e("v_exp_f32 v%d, v%d" % (M + 2 * w, M + 2 * w))
    nop(1)
    R = T0 + 16
    e("v_mul_f32 v%d, v%d, v%d" % (R, M, T0))
    e("v_mul_f32 v%d, v%d, v%d" % (R + 2, M, T0 + 1))
    e("v_mul_f32 v%d, v%d, v%d" % (R + 6, M, M + 1))
    for w in range(1, 4):
        e("v_fmac_f32 v%d, v%d, v%d" % (R, M + 2 * w, T0 + 2 * w))
        e("v_fmac_f32 v%d, v%d, v%d" % (R + 2, M + 2 * w, T0 + 2 * w + 1))
        e("v_fmac_f32 v%d, v%d, v%d" % (R + 6, M + 2 * w, M + 2 * w + 1))
    e("v_mov_b32 v%d, s%d" % (R + 1, sT))
    e("v_mov_b32 v%d, s%d" % (R + 3, sT))
    e("v_mov_b32 v%d, v12" % (R + 4))
    e("v_mov_b32 v%d, s%d" % (R + 5, sT))
    e("v_mov_b32 v%d, s%d" % (R + 7, sT))
    e("buffer_store_dwordx4 %s, v7, %s, s15 offen sc1" % (vr(R, 4), sr(SWS, 4)))
    e("buffer_store_dwordx4 %s, v8, %s, s16 offen sc1" % (vr(R + 4, 4), sr(SWS, 4)))
    e("s_lshl_b32 s13, s%d, 3" % sW)
    e("s_add_u32 s13, s13, s%d" % sKVH)
    e("s_lshr_b32 s17, s%d, 1" % sS)
    e("s_lshl_b32 s15, s13, 15")
    e("s_lshl_b32 s16, s17, 10")
    e("s_add_u32 s15, s15, s16")
    e("s_and_b32 s16, s%d, 1" % sS)
    e("s_lshl_b32 s16, s16, 9")
    e("s_add_u32 s15, s15, s16")
    e("s_add_u32 s15, s15, %d" % OB)
    e("s_lshl_b32 s16, s13, 2")
    e("s_add_u32 s16, s16, s17")
    e("s_lshl_b32 s16, s16, 7")
    e("s_add_u32 s16, s16, %d" % SB)
    e("s_mul_i32 s17, s%d, 112" % sRB)
    e("s_add_u32 s17, s17, %d" % HB)
    e("v_lshlrev_b32 v5, 3, v%d" % vLANE)
    e("v_add_u32 v6, 0x4000, v5")
    e("v_mov_b32 v7, 0")
    e("v_lshlrev_b32 v8, 13, v%d" % vB4)
    e("v_lshl_add_u32 v8, v%d, 5, v8" % vG)
    OG, ST, HG = QP, QP + 16, QP + 48
    e("s_mov_b32 s%d, 0" % sCNT)
    e("L_p2:")
    for s in range(8):
        pass
    for s in range(8):
        e("s_add_u32 s18, s15, %d" % (4096 * s))
        e("buffer_load_dwordx2 %s, v5, %s, s18 offen sc1" % (vr(OG + 2 * s, 2), sr(SWS, 4)))
    for s in range(8):
        e("buffer_load_dwordx4 %s, v7, %s, s16 offen offset:%d sc1" % (vr(ST + 4 * s, 4), sr(SWS, 4), 16 * s))
    for h in range(2):
        e("buffer_load_dwordx4 %s, v8, %s, s17 offen offset:%d sc1" % (vr(HG + 4 * h, 4), sr(SWS, 4), 16 * h))
    e("s_waitcnt vmcnt(0)")
    e("v_cmp_eq_u32 vcc, 3, v%d" % vG)
    e("v_mov_b32 v9, s%d" % sT)
    e("v_mov_b32 v10, 0")
    nop(1)
    e("v_cndmask_b32 v%d, v%d, v10, vcc" % (HG + 4, HG + 4))
    e("v_cndmask_b32 v%d, v%d, v9, vcc" % (HG + 5, HG + 5))
    e("v_cndmask_b32 v%d, v%d, v10, vcc" % (HG + 6, HG + 6))
    e("v_cndmask_b32 v%d, v%d, v9, vcc" % (HG + 7, HG + 7))
    tags = [OG + 2 * s + 1 for s in range(8)] + [ST + 2 * k + 1 for k in range(16)] + [HG + 2 * k + 1 for k in range(4)]
    tagcheck(tags, 9, 10, "L_p2", "L_p2d")
    e("v_max3_f32 v12, v%d, v%d, v%d" % (ST, ST + 4, ST + 8))
    e("v_max3_f32 v12, v12, v%d, v%d" % (ST + 12, ST + 16))
    e("v_max3_f32 v12, v12, v%d, v%d" % (ST + 20, ST + 24))
    e("v_max_f32 v12, v12, v%d" % (ST + 28))
    for s in range(8):
        e("v_sub_f32 v%d, v%d, v12" % (ST + 4 * s, ST + 4 * s))
    for s in range(8):
        e("v_exp_f32 v%d, v%d" % (ST + 4 * s, ST + 4 * s))
    nop(1)
    e("v_mul_f32 v13, v%d, v%d" % (ST, ST + 2))
    e("v_mul_f32 v14, v%d, v%d" % (ST, OG))
    for s in range(1, 8):
        e("v_fmac_f32 v13, v%d, v%d" % (ST + 4 * s, ST + 4 * s + 2))
        e("v_fmac_f32 v14, v%d, v%d" % (ST + 4 * s, OG + 2 * s))
    e("v_rcp_f32 v15, v13")
    nop(1)
    e("v_mul_f32 v12, v14, v15")
    e("v_fma_f32 v14, -v12, v13, v14")
    e("v_fma_f32 v12, v14, v15, v12")
    e("v_cvt_pk_bf16_f32 v12, v12, v12")
    e("s_lshl_b32 s13, s%d, 7" % sW)
    e("s_add_u32 s13, s13, %d" % OA)
    e("v_lshlrev_b32 v5, 1, v%d" % vLANE)
    e("v_add_u32 v5, s13, v5")
    e("ds_write_b16 v5, v12")
    HA = T0
    for k in range(4):
        e("v_mov_b32 v%d, v%d" % (HA + k, HG + 2 * k))
    e("s_waitcnt lgkmcnt(0)")
    e("s_barrier")
    AO = T0 + 4
    e("v_lshlrev_b32 v5, 7, v%d" % vB4)
    e("v_lshl_add_u32 v5, v%d, 4, v5" % vG)
    e("v_add_u32 v5, %d, v5" % OA)
    e("ds_read_b128 %s, v5" % vr(AO, 4))
    e("ds_read_b128 %s, v5 offset:64" % vr(AO + 4, 4))
    e("v_lshrrev_b32 v8, 2, v%d" % vLANE)
    e("v_and_b32 v8, 3, v8")
    e("v_lshl_add_u32 v8, v%d, 3, v8" % vG)
    e("v_lshlrev_b32 v8, 6, v8")
    e("v_lshl_add_u32 v8, v%d, 3, v8" % vB4)
    e("v_and_b32 v9, 1, v%d" % vG)
    e("v_lshl_add_u32 v8, v9, 5, v8")
    e("v_xor_b32 v9, 32, v8")
    e("s_lshl_b32 s13, s%d, 12" % sW)
    e("v_add_u32 v10, s13, v8")
    e("v_add_u32 v11, s13, v9")
    e("s_lshl_b32 s13, s%d, 11" % sW)
    e("v_add_u32 v8, s13, v8")
    e("v_add_u32 v9, s13, v9")
    BO = T0 + 16
    BM = T0 + 32
    for ct in range(2):
        for kk in range(2):
            e("ds_read_b64_tr_b16 %s, v%d offset:%d" % (vr(BO + 8 * ct + 4 * kk, 2), 10 + ct, WQ + kk * 2048))
            e("ds_read_b64_tr_b16 %s, v%d offset:%d" % (vr(BO + 8 * ct + 4 * kk + 2, 2), 10 + ct, WQ + kk * 2048 + 256))
        e("ds_read_b64_tr_b16 %s, v%d offset:%d" % (vr(BM + 4 * ct, 2), 8 + ct, W1))
        e("ds_read_b64_tr_b16 %s, v%d offset:%d" % (vr(BM + 4 * ct + 2, 2), 8 + ct, W1 + 256))
    e("s_waitcnt lgkmcnt(0)")
    DA = T0 + 40
    DM = T0 + 48
    for ct in range(2):
        for kk in range(2):
            e("v_mfma_f32_16x16x32_bf16 %s, %s, %s, %s" % (vr(DA + 4 * ct, 4), vr(AO + 4 * kk, 4), vr(BO + 8 * ct + 4 * kk, 4), "0" if kk == 0 else vr(DA + 4 * ct, 4)))
        e("v_mfma_f32_16x16x32_bf16 %s, %s, %s, 0" % (vr(DM + 4 * ct, 4), vr(HA, 4), vr(BM + 4 * ct, 4)))
    e("s_lshl_b32 s13, s%d, 19" % sCB)
    e("s_lshl_b32 s15, s%d, 17" % sW)
    e("s_add_u32 s13, s13, s15")
    e("s_lshl_b32 s15, s%d, 7" % sRB)
    e("s_add_u32 s13, s13, s15")
    e("s_add_u32 s13, s13, %d" % PB)
    e("s_add_u32 s15, s13, 65536")
    e("v_lshrrev_b32 v5, 1, v%d" % vN)
    e("v_lshlrev_b32 v5, 13, v5")
    e("v_and_b32 v6, 1, v%d" % vN)
    e("v_lshl_add_u32 v5, v6, 6, v5")
    e("v_lshl_add_u32 v5, v%d, 4, v5" % vG)
    e("v_cmp_eq_u32 s[16:17], 1, v%d" % vG)
    e("v_cmp_eq_u32 s[18:19], 2, v%d" % vG)
    e("v_cmp_eq_u32 s[20:21], 3, v%d" % vG)
    nop(4)
    for ct in range(2):
        R = T0 + 56 + 4 * ct
        for src, dst in ((DA + 4 * ct, R), (DM + 4 * ct, R + 2)):
            e("v_cndmask_b32 v%d, v%d, v%d, s[16:17]" % (dst, src, src + 1))
            e("v_cndmask_b32 v%d, v%d, v%d, s[18:19]" % (dst, dst, src + 2))
            e("v_cndmask_b32 v%d, v%d, v%d, s[20:21]" % (dst, dst, src + 3))
        e("v_mov_b32 v%d, s%d" % (R + 1, sT))
        e("v_mov_b32 v%d, s%d" % (R + 3, sT))
        e("buffer_store_dwordx4 %s, v5, %s, s%d offen sc1" % (vr(R, 4), sr(SWS, 4), 13 if ct == 0 else 15))
    e("s_lshl_b32 s16, s%d, 7" % sCB)
    e("s_lshl_b32 s17, s%d, 1" % sRB)
    e("s_add_u32 s16, s16, s17")
    e("s_lshr_b32 s17, s%d, 1" % sW)
    e("s_add_u32 s16, s16, s17")
    e("s_lshl_b32 s16, s16, 1")
    e("v_mov_b32 v6, 0")
    e("buffer_load_ushort v11, v6, %s, s16 offen" % sr(SB2, 4))
    e("s_lshl_b32 s13, s%d, 19" % sCB)
    e("s_lshl_b32 s15, s%d, 13" % sRB)
    e("s_add_u32 s13, s13, s15")
    e("s_lshl_b32 s15, s%d, 5" % sW)
    e("s_add_u32 s13, s13, s15")
    e("s_add_u32 s13, s13, %d" % PB)
    e("v_lshlrev_b32 v5, 7, v%d" % vLANE)
    F = QP
    e("s_mov_b32 s%d, 0" % sCNT)
    e("L_p3:")
    e("buffer_load_dwordx4 %s, v5, %s, s13 offen sc1" % (vr(F, 4), sr(SWS, 4)))
    e("buffer_load_dwordx4 %s, v5, %s, s13 offen offset:16 sc1" % (vr(F + 4, 4), sr(SWS, 4)))
    e("s_waitcnt vmcnt(0)")
    tagcheck([F + 1, F + 3, F + 5, F + 7], 9, 10, "L_p3", "L_p3d")
    for k in range(4):
        allreduce_row16("v_add_f32", F + 2 * k, 14)
        allreduce_rows("v_add_f32", F + 2 * k, 14)
    e("v_and_b32 v6, 1, v%d" % vLANE)
    e("v_cmp_eq_u32 vcc, 1, v6")
    e("s_and_b32 s17, s%d, 1" % sW)
    e("s_cmp_eq_u32 s17, 1")
    e("s_cselect_b32 s18, s%d, s%d" % (sG + 2, sG))
    e("s_cselect_b32 s19, s%d, s%d" % (sG + 3, sG + 1))
    e("v_mov_b32 v12, s18")
    e("v_mov_b32 v13, s19")
    e("v_cndmask_b32 v12, v12, v13, vcc")
    e("v_cndmask_b32 v13, v%d, v%d, vcc" % (F, F + 4))
    e("v_cndmask_b32 v14, v%d, v%d, vcc" % (F + 2, F + 6))
    rbf(13, 13, 15)
    rbf(14, 14, 15)
    e("v_lshlrev_b32 v11, 16, v11")
    e("v_add_f32 v14, v14, v11")
    rbf(14, 14, 15)
    e("v_mul_f32 v13, v12, v13")
    rbf(13, 13, 15)
    e("v_sub_f32 v12, 1.0, v12")
    rbf(12, 12, 15)
    e("v_mul_f32 v14, v12, v14")
    rbf(14, 14, 15)
    e("v_add_f32 v13, v13, v14")
    e("v_cvt_pk_bf16_f32 v13, v13, v13")
    e("s_lshl_b32 s17, s17, 11")
    e("s_add_u32 s16, s16, s17")
    e("v_lshlrev_b32 v6, 10, v6")
    e("s_mov_b64 exec, 3")
    e("buffer_store_short v13, v6, %s, s16 offen" % sr(SOUT, 4))
    e("s_mov_b64 exec, -1")
    e("s_or_b32 s13, s2, s%d" % sW)
    e("s_cmp_lg_u32 s13, 0")
    e("s_cbranch_scc1 L_end")
    e("v_mov_b32 v5, 0")
    e("v_mov_b32 v6, s%d" % sT)
    e("buffer_store_dword v6, v5, %s, 0 offen" % sr(SWS, 4))
    e("L_end:")
    e("s_endpgm")

body()
text = HEADER + "; @launch grid=(256,1,1) block=(256,1,1) lds=%d\n" % LDS_BYTES
text += """.amdgcn_target "amdgcn-amd-amdhsa--gfx950"
.text
.globl {n}_kernel
.p2align 8
.type {n}_kernel,@function
{n}_kernel:
""".format(n=NAME)
text += "\n".join(out) + "\n"
text += """.section .rodata,"a"
.p2align 6
.amdhsa_kernel {n}_kernel
  .amdhsa_next_free_vgpr 256
  .amdhsa_next_free_sgpr 102
  .amdhsa_accum_offset 256
  .amdhsa_group_segment_fixed_size 0
  .amdhsa_kernarg_size 112
  .amdhsa_user_sgpr_count 2
  .amdhsa_user_sgpr_kernarg_segment_ptr 1
  .amdhsa_system_sgpr_workgroup_id_x 1
  .amdhsa_float_denorm_mode_32 3
.end_amdhsa_kernel
""".format(n=NAME)
path = sys.argv[1] if len(sys.argv) > 1 else "cdna_kernels/%s.s" % NAME
open(path, "w").write(text)
print("wrote", path, len(out), "lines")
```

```python
import sys, os

NAME = "gated_mix__sliding_block_cached__mixer_channel_mlp__decode"
HEADER = open("cdna_kernels/%s.s.ref" % NAME).read().split("; Override launch geometry")[0]

LDS_BYTES = 128 * 1024
WQ = 0x0000; W1 = 0x4000; KK = 0x6000; VV = 0xE000; WO = 0x16000; W2 = 0x1A000
SC = 0x1C000
QL = SC; OST = SC + 0x400; OA = SC + 0x500; HAL = SC + 0x700; FR = SC + 0x800; OBUF = SC + 0x1000
QB = 0x10000; HB = 0x90000; SB = 0x110000; OB = 0x120000; PB = 0x220000; WS_END = 0x420000
LIMIT = 20000
STAMP = int(os.environ.get("STAMP", "0"))
if STAMP: WS_END = 0x900000

out = []
def e(s=""):
    out.append("    " + s if s and not s.endswith(":") else s)
def nop(n):
    while n > 0:
        k = min(n, 16)
        e("s_nop %d" % (k - 1)); n -= k
def vr(a, n): return "v[%d:%d]" % (a, a + n - 1)
def sr(a, n): return "s[%d:%d]" % (a, a + n - 1)

sKVH, sJ, sB, sS, sW, sRB, sCB, sT, sCNT = 4, 5, 6, 7, 8, 9, 10, 11, 12
SX, SK, SV, SWQ, SWO, SW1, SB1, SW2, SB2, SGW, SOUT, SWS = 44, 48, 52, 56, 60, 64, 68, 72, 76, 80, 84, 88
vLANE, vG, vN, vB4 = 1, 2, 3, 4
vGATE, vB1, vB2, vR = 16, 17, 18, 19
vQP, vHP, vT16, vL16, vL8, vL32, vZ, vPP = 244, 245, 246, 247, 248, 249, 250, 251
PRETOUCH = int(os.environ.get("PRETOUCH", "0"))
NPT = 28 if PRETOUCH else 0
XF, XM, XA, GW = 20, 36, 44, 60
KF, VF = 76, 108
QF = 140
G0 = 156
T0 = 220

stamp_n = [0]
def stamp(extra=None):
    if not STAMP: return
    k = stamp_n[0]; stamp_n[0] += 1
    e("s_memrealtime s[96:97]")
    e("s_lshl_b32 s98, s2, 2")
    e("s_add_u32 s98, s98, s%d" % sW)
    e("s_lshl_b32 s98, s98, 7")
    e("s_add_u32 s98, s98, 0x800000")
    e("s_waitcnt lgkmcnt(0)")
    e("v_mov_b32 v252, s96")
    e("v_mov_b32 v253, %s" % (extra if extra else "0"))
    e("v_mov_b32 v254, 0")
    e("buffer_store_dwordx2 v[252:253], v254, s[88:91], s98 offen offset:%d" % (8 * k))

def rbf(dst, src, tmp):
    e("v_cvt_pk_bf16_f32 v%d, v%d, v%d" % (tmp, src, src))
    e("v_lshlrev_b32 v%d, 16, v%d" % (dst, tmp))

def allreduce_rows(op, vs, t):
    for sw in ("v_permlane16_swap_b32", "v_permlane32_swap_b32"):
        for i, v in enumerate(vs):
            e("v_mov_b32 v%d, v%d" % (t + i, v))
        nop(max(0, 3 - len(vs)))
        for i, v in enumerate(vs):
            e("%s v%d, v%d" % (sw, v, t + i))
        for i, v in enumerate(vs):
            e("%s v%d, v%d, v%d" % (op, v, v, t + i))

def allreduce_ror(op, vs):
    for r in (4, 8):
        nop(2 if r == 4 else max(0, 3 - len(vs)))
        for v in vs:
            e("%s_dpp v%d, v%d, v%d row_ror:%d row_mask:0xf bank_mask:0xf" % (op, v, v, v, r))

def tagtest(tags, vmin, vmax):
    t = list(tags)
    for op, acc in (("v_min3_u32", vmin), ("v_max3_u32", vmax)):
        r = list(t)
        e("%s v%d, v%d, v%d, v%d" % (op, acc, r[0], r[1], r[2])); r = r[3:]
        while len(r) >= 2:
            e("%s v%d, v%d, v%d, v%d" % (op, acc, acc, r[0], r[1])); r = r[2:]
        if r:
            e("%s v%d, v%d, v%d" % (op.replace("3_", "_"), acc, acc, r[0]))
    e("v_xor_b32 v%d, s%d, v%d" % (vmin, sT, vmin))
    e("v_xor_b32 v%d, s%d, v%d" % (vmax, sT, vmax))
    e("v_or_b32 v%d, v%d, v%d" % (vmin, vmin, vmax))
    e("v_cmp_ne_u32 vcc, 0, v%d" % vmin)

def loopctl(label, done):
    e("s_add_u32 s%d, s%d, 1" % (sCNT, sCNT))
    e("s_cmp_lt_u32 s%d, %d" % (sCNT, LIMIT))
    e("s_cbranch_scc0 %s" % done)
    e("s_cbranch_vccnz %s" % label)
    e("%s:" % done)

def dma(srd, vaddr, soff, ldsaddr_s, flags=" nt"):
    e("s_mov_b32 m0, s%d" % ldsaddr_s)
    e("s_nop 0")
    e("buffer_load_dwordx4 v%d, %s, s%d offen%s lds" % (vaddr, sr(srd, 4), soff, flags))

def mfma(d, a, b, first):
    e("v_mfma_f32_16x16x32_bf16 %s, %s, %s, %s" % (vr(d, 4), vr(a, 4), vr(b, 4), "0" if first else vr(d, 4)))

def select_g(dst, src):
    e("v_cndmask_b32 v%d, v%d, v%d, s[20:21]" % (dst, src, src + 1))
    e("v_cndmask_b32 v%d, v%d, v%d, s[22:23]" % (dst, dst, src + 2))
    e("v_cndmask_b32 v%d, v%d, v%d, s[24:25]" % (dst, dst, src + 3))

def body():
    e("s_cmp_ge_u32 s2, 256")
    e("s_cbranch_scc1 L_end")
    e("s_load_dwordx16 s[16:31], s[0:1], 0")
    e("s_load_dwordx8 s[32:39], s[0:1], 64")
    e("s_load_dwordx4 s[40:43], s[0:1], 96")
    e("v_and_b32 v%d, 63, v0" % vLANE)
    e("v_lshrrev_b32 v5, 6, v0")
    e("v_lshrrev_b32 v%d, 4, v%d" % (vG, vLANE))
    e("v_and_b32 v%d, 15, v0" % vN)
    e("v_and_b32 v%d, 3, v0" % vB4)
    e("v_readfirstlane_b32 s%d, v5" % sW)
    e("v_bfe_u32 v%d, v0, 2, 2" % vR)
    e("s_and_b32 s%d, s2, 7" % sKVH)
    e("s_lshr_b32 s%d, s2, 3" % sJ)
    e("s_lshr_b32 s%d, s%d, 3" % (sB, sJ))
    e("s_and_b32 s%d, s%d, 7" % (sS, sJ))
    e("s_lshl_b32 s%d, s%d, 3" % (sRB, sKVH))
    e("s_add_u32 s%d, s%d, s%d" % (sRB, sRB, sS))
    e("s_mov_b32 s%d, s%d" % (sCB, sB))
    e("s_waitcnt lgkmcnt(0)")
    e("s_load_dword s%d, s[42:43], 0" % sT)
    srds = [(SX, 16, 4096), (SK, 18, 33554432), (SV, 20, 33554432), (SWQ, 22, 4194304), (SWO, 24, 4194304),
            (SW1, 28, 1835008), (SB1, 30, 3584), (SW2, 32, 1835008), (SB2, 34, 1024), (SGW, 36, 1024),
            (SOUT, 38, 4096), (SWS, 42, WS_END)]
    for d, p, n in srds:
        e("s_mov_b32 s%d, s%d" % (d, p))
        e("s_and_b32 s%d, s%d, 0xffff" % (d + 1, p + 1))
        e("s_mov_b32 s%d, %d" % (d + 2, n))
        e("s_mov_b32 s%d, 0x00020000" % (d + 3))
    stamp()
    e("v_lshrrev_b32 v5, 3, v%d" % vLANE)
    e("v_and_b32 v6, 7, v%d" % vLANE)
    e("v_lshrrev_b32 v7, 4, v%d" % vLANE)
    e("v_and_b32 v7, 1, v7")
    e("v_lshlrev_b32 v7, 1, v7")
    e("v_xor_b32 v6, v6, v7")
    e("v_xor_b32 v7, 4, v6")
    e("v_lshlrev_b32 v8, 13, v5")
    e("v_lshl_add_u32 v9, v7, 4, v8")
    e("v_lshl_add_u32 v8, v6, 4, v8")
    e("s_lshl_b32 s16, s%d, 20" % sB)
    e("s_lshl_b32 s17, s%d, 18" % sW)
    e("s_add_u32 s16, s16, s17")
    e("s_lshl_b32 s17, s%d, 7" % sRB)
    e("s_add_u32 s16, s16, s17")
    e("s_lshl_b32 s18, s%d, 12" % sW)
    for t in range(4):
        dma(SWQ, 8 + (t & 1), 16, 18)
        if t < 3:
            e("s_add_u32 s16, s16, %d" % (8 * 8192))
            e("s_add_u32 s18, s18, 1024")
    e("s_lshl_b32 s13, s%d, 8" % sB)
    e("v_lshlrev_b32 v10, 10, v%d" % vB4)
    e("v_lshl_add_u32 v10, v%d, 4, v10" % vG)
    for kk in range(4):
        e("buffer_load_dwordx4 %s, v10, %s, s13 offen offset:%d" % (vr(XF + 4 * kk, 4), sr(SX, 4), 64 * kk))
    e("s_lshl_b32 s13, s%d, 7" % sKVH)
    for kk in range(2):
        e("buffer_load_dwordx4 %s, v10, %s, s13 offen offset:%d" % (vr(XM + 4 * kk, 4), sr(SX, 4), 64 * kk))
    e("v_lshrrev_b32 v11, 2, v%d" % vLANE)
    e("v_lshlrev_b32 v11, 6, v11")
    e("v_lshl_add_u32 v12, v%d, 10, v11" % vB4)
    for k in range(4):
        e("buffer_load_dwordx4 %s, v12, %s, 0 offen offset:%d" % (vr(XA + 4 * k, 4), sr(SX, 4), 16 * k))
    for k in range(4):
        e("buffer_load_dwordx4 %s, v11, %s, 0 offen offset:%d" % (vr(GW + 4 * k, 4), sr(SGW, 4), 16 * k))
    e("s_mul_i32 s13, s%d, 56" % sRB)
    e("v_lshlrev_b32 v11, 1, v%d" % vLANE)
    e("buffer_load_ushort v%d, v11, %s, s13 offen" % (vB1, sr(SB1, 4)))
    e("s_lshl_b32 s13, s%d, 8" % sCB)
    e("s_lshl_b32 s14, s%d, 2" % sRB)
    e("s_add_u32 s13, s13, s14")
    e("v_and_b32 v11, 1, v%d" % vR)
    e("v_lshlrev_b32 v11, 1, v11")
    e("buffer_load_ushort v%d, v11, %s, s13 offen" % (vB2, sr(SB2, 4)))
    e("s_cmp_ge_u32 s%d, 28" % sJ)
    e("s_cbranch_scc1 L_now1")
    e("s_mov_b32 s15, 3584")
    e("v_mul_lo_u32 v8, v5, s15")
    e("v_lshl_add_u32 v9, v7, 4, v8")
    e("v_lshl_add_u32 v8, v6, 4, v8")
    e("s_mul_i32 s16, s%d, %d" % (sKVH, 64 * 3584))
    e("s_mul_i32 s17, s%d, %d" % (sW, 16 * 3584))
    e("s_add_u32 s16, s16, s17")
    e("s_lshl_b32 s17, s%d, 7" % sJ)
    e("s_add_u32 s16, s16, s17")
    e("s_lshl_b32 s18, s%d, 11" % sW)
    e("s_add_u32 s18, s18, %d" % W1)
    for t in range(2):
        dma(SW1, 8 + t, 16, 18)
        if t == 0:
            e("s_add_u32 s16, s16, %d" % (8 * 3584))
            e("s_add_u32 s18, s18, 1024")
    e("L_now1:")
    e("s_lshl_b32 s16, s%d, 3" % sB)
    e("s_add_u32 s16, s16, s%d" % sKVH)
    e("s_lshl_b32 s16, s16, 12")
    e("s_lshl_b32 s17, s%d, 7" % sS)
    e("s_add_u32 s16, s16, s17")
    e("s_lshl_b32 s17, s%d, 5" % sW)
    e("s_add_u32 s16, s16, s17")
    e("s_add_u32 s16, s16, 3072")
    e("s_lshl_b32 s16, s16, 8")
    e("s_mov_b32 s17, s16")
    e("v_xor_b32 v5, v%d, v%d" % (vN, vG))
    e("v_lshlrev_b32 v5, 4, v5")
    e("v_lshl_add_u32 v5, v%d, 8, v5" % vG)
    e("v_xor_b32 v6, 64, v5")
    e("v_xor_b32 v7, 0x80, v5")
    e("v_xor_b32 v8, 0xc0, v5")
    e("s_lshl_b32 s18, s%d, 13" % sW)
    e("s_add_u32 s18, s18, %d" % KK)
    for t in range(8):
        dma(SK, 5 + (t & 3), 16, 18)
        e("s_add_u32 s16, s16, 1024")
        e("s_add_u32 s18, s18, 1024")
    e("v_lshlrev_b32 v7, 1, v%d" % vG)
    e("v_xor_b32 v5, v%d, v7" % vN)
    e("v_xor_b32 v6, 8, v5")
    e("v_lshlrev_b32 v5, 4, v5")
    e("v_lshlrev_b32 v6, 4, v6")
    e("v_lshl_add_u32 v5, v%d, 8, v5" % vG)
    e("v_lshl_add_u32 v6, v%d, 8, v6" % vG)
    e("s_lshl_b32 s18, s%d, 13" % sW)
    e("s_add_u32 s18, s18, %d" % VV)
    for t in range(8):
        dma(SV, 5 + (t & 1), 17, 18)
        if t < 7:
            e("s_add_u32 s17, s17, 1024")
            e("s_add_u32 s18, s18, 1024")
    e("v_lshlrev_b32 v7, 1, v%d" % vG)
    e("v_xor_b32 v5, v%d, v7" % vN)
    e("v_xor_b32 v6, 8, v5")
    e("s_and_b32 s14, s%d, 1" % sW)
    e("s_lshl_b32 s14, s14, 3")
    e("v_xor_b32 v7, s14, v5")
    e("v_lshlrev_b32 v5, 4, v5")
    e("v_lshlrev_b32 v6, 4, v6")
    e("v_lshlrev_b32 v7, 4, v7")
    e("v_lshl_add_u32 v5, v%d, 10, v5" % vG)
    e("v_lshl_add_u32 v6, v%d, 10, v6" % vG)
    e("v_lshl_add_u32 v7, v%d, 10, v7" % vG)
    e("s_lshl_b32 s15, s%d, 8" % sCB)
    e("s_lshl_b32 s16, s%d, 16" % sRB)
    e("s_add_u32 s16, s16, s15")
    e("s_lshl_b32 s17, s%d, 14" % sW)
    e("s_add_u32 s16, s16, s17")
    e("s_lshl_b32 s18, s%d, 12" % sW)
    e("s_add_u32 s18, s18, %d" % WO)
    e("s_mul_i32 s19, s%d, %d" % (sRB, 28 * 1024))
    e("s_add_u32 s19, s19, s15")
    e("s_lshl_b32 s17, s%d, 13" % sW)
    e("s_add_u32 s19, s19, s17")
    e("s_lshl_b32 s17, s%d, 11" % sW)
    e("s_add_u32 s17, s17, %d" % W2)
    for t in range(4):
        dma(SWO, 5 + (t >> 1), 16, 18)
        if t < 3:
            e("s_add_u32 s16, s16, 4096")
            e("s_add_u32 s18, s18, 1024")
    for t in range(2):
        dma(SW2, 7, 19, 17)
        if t < 1:
            e("s_add_u32 s19, s19, 4096")
            e("s_add_u32 s17, s17, 1024")
    e("s_lshl_b32 s26, s%d, 15" % sB)
    e("s_lshl_b32 s14, s%d, 12" % sKVH)
    e("s_add_u32 s26, s26, s14")
    e("s_add_u32 s26, s26, %d" % QB)
    e("s_add_u32 s27, s26, 0x20000")
    e("s_add_u32 s28, s26, 0x40000")
    e("s_add_u32 s29, s26, 0x60000")
    e("s_lshl_b32 s30, s%d, 17" % sB)
    e("s_lshl_b32 s14, s%d, 9" % sRB)
    e("s_add_u32 s30, s30, s14")
    e("s_lshl_b32 s14, s%d, 7" % sW)
    e("s_add_u32 s30, s30, s14")
    e("s_add_u32 s30, s30, %d" % QB)
    e("s_lshl_b32 s31, s%d, 16" % sKVH)
    e("s_lshl_b32 s15, s%d, 9" % sJ)
    e("s_add_u32 s31, s31, s15")
    e("s_add_u32 s31, s31, s14")
    e("s_add_u32 s31, s31, %d" % HB)
    e("s_lshl_b32 s13, s%d, 3" % sB)
    e("s_add_u32 s13, s13, s%d" % sKVH)
    e("s_lshl_b32 s32, s13, 3")
    e("s_add_u32 s32, s32, s%d" % sS)
    e("s_lshl_b32 s32, s32, 12")
    e("s_lshl_b32 s16, s%d, 10" % sW)
    e("s_add_u32 s32, s32, s16")
    e("s_add_u32 s32, s32, %d" % OB)
    e("s_lshl_b32 s33, s13, 2")
    e("s_add_u32 s33, s33, s%d" % sW)
    e("s_lshl_b32 s33, s33, 3")
    e("s_add_u32 s33, s33, s%d" % sS)
    e("s_lshl_b32 s33, s33, 4")
    e("s_add_u32 s33, s33, %d" % SB)
    e("s_lshl_b32 s13, s%d, 3" % sW)
    e("s_add_u32 s13, s13, s%d" % sKVH)
    e("s_lshr_b32 s17, s%d, 1" % sS)
    e("s_lshl_b32 s34, s13, 15")
    e("s_lshl_b32 s16, s17, 10")
    e("s_add_u32 s34, s34, s16")
    e("s_and_b32 s16, s%d, 1" % sS)
    e("s_lshl_b32 s16, s16, 9")
    e("s_add_u32 s34, s34, s16")
    e("s_add_u32 s34, s34, %d" % OB)
    e("s_lshl_b32 s35, s13, 2")
    e("s_add_u32 s35, s35, s17")
    e("s_lshl_b32 s35, s35, 7")
    e("s_add_u32 s35, s35, %d" % SB)
    e("s_mul_i32 s36, s%d, 224" % sRB)
    e("s_lshl_b32 s14, s%d, 14" % sW)
    e("s_add_u32 s36, s36, s14")
    e("s_add_u32 s36, s36, %d" % HB)
    e("s_lshl_b32 s37, s%d, 19" % sCB)
    e("s_lshl_b32 s15, s%d, 17" % sW)
    e("s_add_u32 s39, s37, %d" % PB)
    e("s_add_u32 s37, s37, s15")
    e("s_lshl_b32 s15, s%d, 7" % sRB)
    e("s_add_u32 s37, s37, s15")
    e("s_add_u32 s37, s37, %d" % PB)
    e("s_add_u32 s38, s37, 65536")
    e("s_lshl_b32 s15, s%d, 13" % sRB)
    e("s_add_u32 s39, s39, s15")
    e("s_lshl_b32 s15, s%d, 11" % sW)
    e("s_add_u32 s39, s39, s15")
    e("v_lshlrev_b32 v%d, 15, v%d" % (vQP, vG))
    e("v_lshl_add_u32 v%d, v%d, 3, v%d" % (vQP, vN, vQP))
    e("v_lshlrev_b32 v%d, 14, v%d" % (vHP, vG))
    e("v_lshl_add_u32 v%d, v%d, 3, v%d" % (vHP, vN, vHP))
    e("v_lshlrev_b32 v%d, 4, v0" % vT16)
    e("v_lshlrev_b32 v%d, 4, v%d" % (vL16, vLANE))
    e("v_lshlrev_b32 v%d, 3, v%d" % (vL8, vLANE))
    e("v_lshlrev_b32 v%d, 5, v%d" % (vL32, vLANE))
    e("v_mov_b32 v%d, 0" % vZ)
    e("v_lshrrev_b32 v%d, 1, v%d" % (vPP, vN))
    e("v_lshlrev_b32 v%d, 13, v%d" % (vPP, vPP))
    e("v_and_b32 v6, 1, v%d" % vN)
    e("v_lshl_add_u32 v%d, v6, 6, v%d" % (vPP, vPP))
    e("v_lshl_add_u32 v%d, v%d, 4, v%d" % (vPP, vG, vPP))
    if PRETOUCH:
        D = KF
        def touch(v, so):
            e("buffer_load_dword v%d, v%d, %s, s%d offen sc1" % (D, v, sr(SWS, 4), so))
        for r in range(4): touch(vT16, 26 + r)
        touch(vQP, 30); touch(vHP, 31); touch(vL16, 32); touch(vZ, 33); touch(vZ, 35)
        for k in range(8):
            e("s_add_u32 s18, s34, %d" % (4096 * k)); touch(vL8, 18)
        for k in range(8):
            e("s_add_u32 s18, s36, %d" % (65536 * k)); touch(vL8, 18)
        touch(vPP, 37); touch(vPP, 38); touch(vL32, 39)
    e("v_cmp_eq_u32 s[20:21], 1, v%d" % vG)
    e("v_cmp_eq_u32 s[22:23], 2, v%d" % vG)
    e("v_cmp_eq_u32 s[24:25], 3, v%d" % vG)
    e("s_waitcnt lgkmcnt(0)")
    e("s_add_u32 s%d, s%d, 1" % (sT, sT))
    e("v_lshl_add_u32 v9, v%d, 3, v%d" % (vG, vR))
    e("v_lshlrev_b32 v10, 7, v9")
    e("v_lshl_add_u32 v10, v%d, 3, v10" % vB4)
    e("v_lshrrev_b32 v11, 1, v%d" % vR)
    e("v_and_b32 v12, 1, v%d" % vG)
    e("v_lshl_or_b32 v11, v12, 1, v11")
    e("v_xor_b32 v11, s%d, v11" % sW)
    e("v_lshl_add_u32 v10, v11, 5, v10")
    e("s_waitcnt vmcnt(%d)" % (22 + NPT))
    e("s_barrier")
    stamp()
    BF = G0
    for kk in range(4):
        e("ds_read_b64_tr_b16 %s, v10 offset:%d" % (vr(BF + 4 * kk, 2), WQ + kk * 4096))
        e("ds_read_b64_tr_b16 %s, v10 offset:%d" % (vr(BF + 4 * kk + 2, 2), WQ + kk * 4096 + 512))
    e("v_mov_b32 v%d, s%d" % (T0 + 5, sT))
    e("s_waitcnt lgkmcnt(0)")
    for kk in range(4):
        mfma(T0, XF + 4 * kk, BF + 4 * kk, kk == 0)
    nop(8)
    select_g(T0 + 4, T0)
    e("buffer_store_dwordx2 %s, v%d, %s, s30 offen sc1" % (vr(T0 + 4, 2), vQP, sr(SWS, 4)))
    stamp()
    U = G0
    for k in range(16):
        e("v_lshlrev_b32 v%d, 16, v%d" % (U + 2 * k, XA + k))
        e("v_and_b32 v%d, 0xffff0000, v%d" % (U + 2 * k + 1, XA + k))
    e("v_mov_b32 v12, 0")
    e("v_mov_b32 v13, 0")
    for k in range(16):
        e("v_lshlrev_b32 v14, 16, v%d" % (GW + k))
        e("v_and_b32 v15, 0xffff0000, v%d" % (GW + k))
        e("v_mul_f32 v14, v14, v%d" % (U + 2 * k))
        e("v_mul_f32 v15, v15, v%d" % (U + 2 * k + 1))
        e("v_cvt_pk_bf16_f32 v14, v14, v15")
        e("v_and_b32 v15, 0xffff0000, v14")
        e("v_lshlrev_b32 v14, 16, v14")
        e("v_add_f32 v13, v13, v14")
        e("v_add_f32 v13, v13, v15")
        e("v_add_f32 v12, v12, v%d" % (U + 2 * k))
        e("v_add_f32 v12, v12, v%d" % (U + 2 * k + 1))
    allreduce_ror("v_add_f32", [12, 13])
    allreduce_rows("v_add_f32", [12, 13], 14)
    e("v_mul_f32 v12, 0x3b000000, v12")
    e("v_mov_b32 v11, 0")
    for k in range(32):
        e("v_sub_f32 v14, v%d, v12" % (U + k))
        e("v_fmac_f32 v11, v14, v14")
    allreduce_ror("v_add_f32", [11])
    allreduce_rows("v_add_f32", [11], 14)
    e("v_mul_f32 v11, 0x3b000000, v11")
    rbf(12, 12, 14)
    rbf(11, 11, 14)
    e("v_add_f32 v11, 0x3727c5ac, v11")
    rbf(11, 11, 14)
    e("v_sqrt_f32 v11, v11")
    nop(1)
    rbf(11, 11, 14)
    e("v_rcp_f32 v9, v11")
    rbf(13, 13, 14)
    e("v_mul_f32 v13, 0xbfb8aa3b, v13")
    e("v_exp_f32 v13, v13")
    nop(1)
    e("v_add_f32 v13, 1.0, v13")
    e("v_rcp_f32 v13, v13")
    nop(1)
    rbf(vGATE, 13, 14)
    e("s_cmp_ge_u32 s%d, 28" % sJ)
    e("s_cbranch_scc1 L_hdone")
    for kk in range(2):
        e("ds_read_b64_tr_b16 %s, v10 offset:%d" % (vr(BF + 4 * kk, 2), W1 + kk * 4096))
        e("ds_read_b64_tr_b16 %s, v10 offset:%d" % (vr(BF + 4 * kk + 2, 2), W1 + kk * 4096 + 512))
    for k in range(8):
        x = XM + k
        e("v_lshlrev_b32 v14, 16, v%d" % x)
        e("v_and_b32 v15, 0xffff0000, v%d" % x)
        e("v_sub_f32 v14, v14, v12")
        e("v_sub_f32 v15, v15, v12")
        e("v_cvt_pk_bf16_f32 v14, v14, v15")
        e("v_and_b32 v15, 0xffff0000, v14")
        e("v_lshlrev_b32 v14, 16, v14")
        e("v_mul_f32 v6, v14, v9")
        e("v_mul_f32 v7, v15, v9")
        e("v_fma_f32 v14, -v6, v11, v14")
        e("v_fma_f32 v15, -v7, v11, v15")
        e("v_fma_f32 v6, v14, v9, v6")
        e("v_fma_f32 v7, v15, v9, v7")
        e("v_cvt_pk_bf16_f32 v%d, v6, v7" % x)
    e("s_waitcnt lgkmcnt(0)")
    for kk in range(2):
        mfma(T0, XM + 4 * kk, BF + 4 * kk, kk == 0)
    nop(8)
    select_g(T0 + 4, T0)
    e("buffer_store_dwordx2 %s, v%d, %s, s31 offen sc1" % (vr(T0 + 4, 2), vHP, sr(SWS, 4)))
    e("L_hdone:")
    stamp()
    e("v_xor_b32 v6, v%d, v%d" % (vN, vG))
    e("v_lshlrev_b32 v6, 4, v6")
    e("v_lshl_add_u32 v6, v%d, 8, v6" % vN)
    e("s_lshl_b32 s17, s%d, 13" % sW)
    e("s_add_u32 s17, s17, %d" % KK)
    e("v_add_u32 v6, s17, v6")
    e("v_lshrrev_b32 v8, 2, v%d" % vLANE)
    e("v_and_b32 v9, 7, v8")
    e("v_lshlrev_b32 v9, 5, v9")
    e("v_lshl_add_u32 v9, v8, 8, v9")
    e("v_lshl_add_u32 v9, v%d, 3, v9" % vB4)
    e("s_lshl_b32 s17, s%d, 13" % sW)
    e("s_add_u32 s17, s17, %d" % VV)
    e("v_add_u32 v9, s17, v9")
    e("s_mov_b32 s%d, 0" % sCNT)
    QG = G0
    def p1_issue():
        for r in range(4):
            e("buffer_load_dwordx4 %s, v%d, %s, s%d offen sc1" % (vr(QG + 4 * r, 4), vT16, sr(SWS, 4), 26 + r))
        e("s_waitcnt vmcnt(0)")
    p1_issue()
    for kk in range(4):
        if kk: e("v_xor_b32 v7, %d, v6" % (64 * kk))
        for t in range(2):
            e("ds_read_b128 %s, v%d offset:%d" % (vr(KF + 16 * t + 4 * kk, 4), 7 if kk else 6, 4096 * t))
    for u in range(8):
        if u: e("v_xor_b32 v7, %d, v9" % (u << 5))
        e("ds_read_b64_tr_b16 %s, v%d" % (vr(VF + 4 * u, 2), 7 if u else 9))
        e("ds_read_b64_tr_b16 %s, v%d offset:4096" % (vr(VF + 4 * u + 2, 2), 7 if u else 9))
    tagtest([QG + 2 * k + 1 for k in range(8)], 10, 11)
    e("s_cbranch_vccz L_p1d")
    e("L_p1:")
    p1_issue()
    tagtest([QG + 2 * k + 1 for k in range(8)], 10, 11)
    loopctl("L_p1", "L_p1d")
    e("v_add_f32 v10, v%d, v%d" % (QG, QG + 4))
    e("v_add_f32 v11, v%d, v%d" % (QG + 2, QG + 6))
    e("v_add_f32 v12, v%d, v%d" % (QG + 8, QG + 12))
    e("v_add_f32 v13, v%d, v%d" % (QG + 10, QG + 14))
    e("v_add_f32 v10, v10, v12")
    e("v_add_f32 v11, v11, v13")
    e("v_cvt_pk_bf16_f32 v10, v10, v11")
    e("v_lshlrev_b32 v11, 2, v0")
    e("v_add_u32 v11, %d, v11" % QL)
    e("ds_write_b32 v11, v10")
    e("v_lshlrev_b32 v12, 8, v%d" % vB4)
    e("v_lshl_add_u32 v12, v%d, 4, v12" % vG)
    e("v_add_u32 v12, %d, v12" % QL)
    e("s_waitcnt lgkmcnt(0)")
    e("s_barrier")
    stamp("s%d" % sCNT)
    for kk in range(4):
        e("ds_read_b128 %s, v12 offset:%d" % (vr(QF + 4 * kk, 4), 64 * kk))
    e("s_waitcnt lgkmcnt(0)")
    S = T0
    for t in range(2):
        for kk in range(4):
            mfma(S + 4 * t, KF + 16 * t + 4 * kk, QF + 4 * kk, kk == 0)
    nop(8)
    for k in range(0, 8, 2):
        e("v_cvt_pk_bf16_f32 v14, v%d, v%d" % (S + k, S + k + 1))
        e("v_and_b32 v15, 0xffff0000, v14")
        e("v_lshlrev_b32 v14, 16, v14")
        e("v_mul_f32 v14, 0x3db504f3, v14")
        e("v_mul_f32 v15, 0x3db504f3, v15")
        e("v_cvt_pk_bf16_f32 v14, v14, v15")
        e("v_and_b32 v15, 0xffff0000, v14")
        e("v_lshlrev_b32 v14, 16, v14")
        e("v_mul_f32 v%d, 0x3fb8aa3b, v14" % (S + k))
        e("v_mul_f32 v%d, 0x3fb8aa3b, v15" % (S + k + 1))
    e("v_max3_f32 v12, v%d, v%d, v%d" % (S, S + 1, S + 2))
    e("v_max3_f32 v12, v12, v%d, v%d" % (S + 3, S + 4))
    e("v_max3_f32 v12, v12, v%d, v%d" % (S + 5, S + 6))
    e("v_max_f32 v12, v12, v%d" % (S + 7))
    allreduce_rows("v_max_f32", [12], 14)
    for k in range(8):
        e("v_sub_f32 v%d, v%d, v12" % (S + k, S + k))
    for k in range(8):
        e("v_exp_f32 v%d, v%d" % (S + k, S + k))
    P = T0 + 8
    nop(1)
    for k in range(4):
        e("v_cvt_pk_bf16_f32 v%d, v%d, v%d" % (P + k, S + 2 * k, S + 2 * k + 1))
    e("v_add_f32 v13, v%d, v%d" % (S, S + 1))
    nop(1)
    OACC = G0
    for u in range(8):
        e("v_mfma_f32_16x16x32_bf16 %s, %s, %s, 0" % (vr(OACC + 4 * u, 4), vr(VF + 4 * u, 4), vr(P, 4)))
    for k in range(2, 8):
        e("v_add_f32 v13, v13, v%d" % (S + k))
    allreduce_rows("v_add_f32", [13], 14)
    e("s_lshl_b32 s13, s%d, 11" % sW)
    e("s_add_u32 s13, s13, %d" % OBUF)
    e("v_lshlrev_b32 v5, 9, v%d" % vB4)
    e("v_lshl_add_u32 v5, v%d, 4, v5" % vG)
    e("v_add_u32 v5, s13, v5")
    e("s_lshl_b32 s13, s%d, 5" % sW)
    e("s_add_u32 s13, s13, %d" % OST)
    e("v_lshlrev_b32 v6, 3, v%d" % vB4)
    e("v_add_u32 v6, s13, v6")
    e("ds_write_b64 v6, v[12:13]")
    for u in range(8):
        e("ds_write_b128 v5, %s offset:%d" % (vr(OACC + 4 * u, 4), 64 * u))
    e("s_lshl_b32 s13, s%d, 9" % sW)
    e("s_add_u32 s13, s13, %d" % OBUF)
    e("v_lshlrev_b32 v5, 3, v%d" % vLANE)
    e("v_add_u32 v5, s13, v5")
    e("s_lshl_b32 s13, s%d, 3" % sW)
    e("s_add_u32 s13, s13, %d" % OST)
    e("v_mov_b32 v6, s13")
    e("s_waitcnt lgkmcnt(0)")
    e("s_barrier")
    for w in range(4):
        e("ds_read_b64 %s, v6 offset:%d" % (vr(T0 + 8 + 2 * w, 2), 32 * w))
    for w in range(4):
        e("ds_read_b64 %s, v5 offset:%d" % (vr(T0 + 2 * w, 2), 2048 * w))
    R = T0 + 16
    e("v_mov_b32 v%d, s%d" % (R + 1, sT))
    e("v_mov_b32 v%d, s%d" % (R + 3, sT))
    e("v_mov_b32 v%d, s%d" % (R + 5, sT))
    e("v_mov_b32 v%d, s%d" % (R + 7, sT))
    e("s_waitcnt lgkmcnt(4)")
    M = T0 + 8
    e("v_max3_f32 v%d, v%d, v%d, v%d" % (R + 4, M, M + 2, M + 4))
    e("v_max_f32 v%d, v%d, v%d" % (R + 4, R + 4, M + 6))
    for w in range(4):
        e("v_sub_f32 v%d, v%d, v%d" % (M + 2 * w, M + 2 * w, R + 4))
    for w in range(4):
        e("v_exp_f32 v%d, v%d" % (M + 2 * w, M + 2 * w))
    e("s_waitcnt lgkmcnt(0)")
    e("v_mul_f32 v%d, v%d, v%d" % (R, M, T0))
    e("v_mul_f32 v%d, v%d, v%d" % (R + 2, M, T0 + 1))
    e("v_mul_f32 v%d, v%d, v%d" % (R + 6, M, M + 1))
    for w in range(1, 4):
        e("v_fmac_f32 v%d, v%d, v%d" % (R, M + 2 * w, T0 + 2 * w))
        e("v_fmac_f32 v%d, v%d, v%d" % (R + 2, M + 2 * w, T0 + 2 * w + 1))
        e("v_fmac_f32 v%d, v%d, v%d" % (R + 6, M + 2 * w, M + 2 * w + 1))
    e("buffer_store_dwordx4 %s, v%d, %s, s32 offen sc1" % (vr(R, 4), vL16, sr(SWS, 4)))
    e("buffer_store_dwordx4 %s, v%d, %s, s33 offen sc1" % (vr(R + 4, 4), vZ, sr(SWS, 4)))
    stamp()
    e("v_cmp_lt_u32 s[40:41], 27, v%d" % vLANE)
    OG, ST, HG = G0, G0 + 16, G0 + 48
    e("s_mov_b32 s%d, 0" % sCNT)
    e("L_p2:")
    for s in range(8):
        e("s_add_u32 s18, s34, %d" % (4096 * s))
        e("buffer_load_dwordx2 %s, v%d, %s, s18 offen sc1" % (vr(OG + 2 * s, 2), vL8, sr(SWS, 4)))
    for s in range(8):
        e("buffer_load_dwordx4 %s, v%d, %s, s35 offen offset:%d sc1" % (vr(ST + 4 * s, 4), vZ, sr(SWS, 4), 16 * s))
    for m in range(8):
        e("s_add_u32 s18, s36, %d" % (65536 * m))
        e("buffer_load_dwordx2 %s, v%d, %s, s18 offen sc1" % (vr(HG + 2 * m, 2), vL8, sr(SWS, 4)))
    e("v_mov_b32 v9, s%d" % sT)
    e("s_waitcnt vmcnt(0)")
    for m in range(8):
        e("v_cndmask_b32 v%d, v%d, v9, s[40:41]" % (HG + 2 * m + 1, HG + 2 * m + 1))
    tags = [OG + 2 * s + 1 for s in range(8)] + [ST + 2 * k + 1 for k in range(16)] + [HG + 2 * k + 1 for k in range(8)]
    tagtest(tags, 9, 10)
    loopctl("L_p2", "L_p2d")
    stamp("s%d" % sCNT)
    e("v_max3_f32 v12, v%d, v%d, v%d" % (ST, ST + 4, ST + 8))
    e("v_max3_f32 v12, v12, v%d, v%d" % (ST + 12, ST + 16))
    e("v_max3_f32 v12, v12, v%d, v%d" % (ST + 20, ST + 24))
    e("v_max_f32 v12, v12, v%d" % (ST + 28))
    for s in range(8):
        e("v_sub_f32 v%d, v%d, v12" % (ST + 4 * s, ST + 4 * s))
    for s in range(8):
        e("v_exp_f32 v%d, v%d" % (ST + 4 * s, ST + 4 * s))
    e("v_add_f32 v8, v%d, v%d" % (HG, HG + 2))
    for m in range(2, 8):
        e("v_add_f32 v8, v8, v%d" % (HG + 2 * m))
    e("v_mul_f32 v13, v%d, v%d" % (ST, ST + 2))
    e("v_mul_f32 v14, v%d, v%d" % (ST, OG))
    for s in range(1, 8):
        e("v_fmac_f32 v13, v%d, v%d" % (ST + 4 * s, ST + 4 * s + 2))
        e("v_fmac_f32 v14, v%d, v%d" % (ST + 4 * s, OG + 2 * s))
    e("v_rcp_f32 v15, v13")
    rbf(8, 8, 9)
    e("v_mul_f32 v12, v14, v15")
    e("v_fma_f32 v14, -v12, v13, v14")
    e("v_fma_f32 v12, v14, v15, v12")
    e("v_cvt_pk_bf16_f32 v12, v12, v12")
    e("s_lshl_b32 s13, s%d, 7" % sW)
    e("s_add_u32 s13, s13, %d" % OA)
    e("v_lshlrev_b32 v5, 1, v%d" % vLANE)
    e("v_add_u32 v6, s13, v5")
    e("ds_write_b16 v6, v12")
    e("v_lshlrev_b32 v9, 16, v%d" % vB1)
    e("v_add_f32 v8, v8, v9")
    rbf(8, 8, 9)
    e("v_mul_f32 v9, v8, v8")
    e("v_mul_f32 v9, 0x3d372713, v9")
    e("v_fma_f32 v9, v9, v8, v8")
    e("v_mul_f32 v9, 0x40135761, v9")
    e("v_exp_f32 v9, v9")
    nop(1)
    e("v_add_f32 v9, 1.0, v9")
    e("v_rcp_f32 v9, v9")
    nop(1)
    e("v_fma_f32 v8, -v8, v9, v8")
    e("v_cvt_pk_bf16_f32 v8, v8, v8")
    e("v_cndmask_b32 v8, v8, 0, s[40:41]")
    e("s_lshl_b32 s13, s%d, 6" % sW)
    e("s_add_u32 s13, s13, %d" % HAL)
    e("v_add_u32 v6, s13, v5")
    e("s_mov_b64 exec, 0xffffffff")
    e("ds_write_b16 v6, v8")
    e("s_mov_b64 exec, -1")
    e("v_lshlrev_b32 v5, 7, v%d" % vB4)
    e("v_lshl_add_u32 v5, v%d, 4, v5" % vG)
    e("v_add_u32 v5, %d, v5" % OA)
    e("v_lshlrev_b32 v6, 6, v%d" % vB4)
    e("v_lshl_add_u32 v6, v%d, 4, v6" % vG)
    e("v_add_u32 v6, %d, v6" % HAL)
    e("v_lshl_add_u32 v8, v%d, 3, v%d" % (vG, vR))
    e("v_lshlrev_b32 v8, 8, v8")
    e("v_lshl_add_u32 v8, v%d, 3, v8" % vB4)
    e("v_and_b32 v9, 1, v%d" % vG)
    e("v_lshl_or_b32 v9, v9, 2, v%d" % vR)
    e("s_lshl_b32 s13, s%d, 1" % sW)
    e("v_xor_b32 v9, s13, v9")
    e("v_lshl_add_u32 v8, v9, 5, v8")
    e("v_add_u32 v8, %d, v8" % WO)
    e("v_xor_b32 v9, 32, v8")
    e("s_waitcnt lgkmcnt(0)")
    e("s_barrier")
    HA = T0; AO = T0 + 4
    e("ds_read_b128 %s, v5" % vr(AO, 4))
    e("ds_read_b128 %s, v5 offset:64" % vr(AO + 4, 4))
    e("ds_read_b128 %s, v6" % vr(HA, 4))
    BO = G0; BM = G0 + 16
    for ct in range(2):
        for kk in range(2):
            e("ds_read_b64_tr_b16 %s, v%d offset:%d" % (vr(BO + 8 * ct + 4 * kk, 2), 8 + ct, kk * 8192))
            e("ds_read_b64_tr_b16 %s, v%d offset:%d" % (vr(BO + 8 * ct + 4 * kk + 2, 2), 8 + ct, kk * 8192 + 1024))
        e("ds_read_b64_tr_b16 %s, v%d offset:%d" % (vr(BM + 4 * ct, 2), 8 + ct, W2 - WO))
        e("ds_read_b64_tr_b16 %s, v%d offset:%d" % (vr(BM + 4 * ct + 2, 2), 8 + ct, W2 - WO + 1024))
    RR = G0 + 40
    for k in (1, 3, 5, 7):
        e("v_mov_b32 v%d, s%d" % (RR + k, sT))
    e("s_waitcnt lgkmcnt(0)")
    DA = G0 + 24; DM = G0 + 32
    for ct in range(2):
        for kk in range(2):
            mfma(DA + 4 * ct, AO + 4 * kk, BO + 8 * ct + 4 * kk, kk == 0)
        mfma(DM + 4 * ct, HA, BM + 4 * ct, True)
    nop(5)
    for ct in range(2):
        select_g(RR + 4 * ct, DA + 4 * ct)
        if ct == 1: nop(1)
        select_g(RR + 4 * ct + 2, DM + 4 * ct)
        e("buffer_store_dwordx4 %s, v%d, %s, s%d offen sc1" % (vr(RR + 4 * ct, 4), vPP, sr(SWS, 4), 37 + ct))
    stamp()
    e("s_lshl_b32 s15, s%d, 6" % sW)
    e("s_add_u32 s15, s15, %d" % FR)
    e("v_lshlrev_b32 v6, 4, v%d" % vB4)
    e("v_add_u32 v6, s15, v6")
    F = G0
    e("s_mov_b32 s%d, 0" % sCNT)
    e("L_p3:")
    e("buffer_load_dwordx4 %s, v%d, %s, s39 offen sc1" % (vr(F, 4), vL32, sr(SWS, 4)))
    e("buffer_load_dwordx4 %s, v%d, %s, s39 offen offset:16 sc1" % (vr(F + 4, 4), vL32, sr(SWS, 4)))
    e("s_waitcnt vmcnt(0)")
    tagtest([F + 1, F + 3, F + 5, F + 7], 9, 10)
    loopctl("L_p3", "L_p3d")
    stamp("s%d" % sCNT)
    e("v_mov_b32 v%d, v%d" % (F + 1, F + 2))
    e("v_mov_b32 v%d, v%d" % (F + 2, F + 4))
    e("v_mov_b32 v%d, v%d" % (F + 3, F + 6))
    vs = [F, F + 1, F + 2, F + 3]
    allreduce_ror("v_add_f32", vs)
    allreduce_rows("v_add_f32", vs, F + 8)
    e("ds_write_b128 v6, %s" % vr(F, 4))
    e("s_waitcnt lgkmcnt(0)")
    e("s_barrier")
    e("s_cmp_lg_u32 s%d, 0" % sW)
    e("s_cbranch_scc1 L_end")
    e("v_and_b32 v5, 7, v%d" % vLANE)
    e("v_lshlrev_b32 v5, 3, v5")
    e("v_add_u32 v5, %d, v5" % FR)
    for w in range(4):
        e("ds_read_b64 %s, v5 offset:%d" % (vr(F + 2 * w, 2), 64 * w))
    e("s_lshl_b32 s13, s%d, 8" % sCB)
    e("s_lshl_b32 s14, s%d, 2" % sRB)
    e("s_add_u32 s13, s13, s14")
    e("v_and_b32 v6, 1, v%d" % vR)
    e("v_lshlrev_b32 v6, 1, v6")
    e("v_lshl_add_u32 v6, v%d, 10, v6" % vB4)
    e("v_sub_f32 v12, 1.0, v%d" % vGATE)
    rbf(12, 12, 15)
    e("v_lshlrev_b32 v11, 16, v%d" % vB2)
    e("s_waitcnt lgkmcnt(0)")
    e("v_add_f32 v13, v%d, v%d" % (F, F + 2))
    e("v_add_f32 v14, v%d, v%d" % (F + 1, F + 3))
    e("v_add_f32 v13, v13, v%d" % (F + 4))
    e("v_add_f32 v14, v14, v%d" % (F + 5))
    e("v_add_f32 v13, v13, v%d" % (F + 6))
    e("v_add_f32 v14, v14, v%d" % (F + 7))
    rbf(13, 13, 15)
    rbf(14, 14, 15)
    e("v_add_f32 v14, v14, v11")
    rbf(14, 14, 15)
    e("v_mul_f32 v13, v%d, v13" % vGATE)
    rbf(13, 13, 15)
    e("v_mul_f32 v14, v12, v14")
    rbf(14, 14, 15)
    e("v_add_f32 v13, v13, v14")
    e("v_cvt_pk_bf16_f32 v13, v13, v13")
    e("s_mov_b64 exec, 0xff")
    e("buffer_store_short v13, v6, %s, s13 offen" % sr(SOUT, 4))
    e("s_mov_b64 exec, -1")
    stamp()
    e("s_cmp_lg_u32 s2, 0")
    e("s_cbranch_scc1 L_end")
    e("v_mov_b32 v5, 0")
    e("v_mov_b32 v6, s%d" % sT)
    e("buffer_store_dword v6, v5, %s, 0 offen" % sr(SWS, 4))
    e("L_end:")
    e("s_endpgm")

body()
text = HEADER + "; @launch grid=(256,1,1) block=(256,1,1) lds=%d\n" % LDS_BYTES
text += """.amdgcn_target "amdgcn-amd-amdhsa--gfx950"
.text
.globl {n}_kernel
.p2align 8
.type {n}_kernel,@function
{n}_kernel:
""".format(n=NAME)
text += "\n".join(out) + "\n"
text += """.section .rodata,"a"
.p2align 6
.amdhsa_kernel {n}_kernel
  .amdhsa_next_free_vgpr 256
  .amdhsa_next_free_sgpr 102
  .amdhsa_accum_offset 256
  .amdhsa_group_segment_fixed_size 0
  .amdhsa_kernarg_size 112
  .amdhsa_user_sgpr_count 2
  .amdhsa_user_sgpr_kernarg_segment_ptr 1
  .amdhsa_system_sgpr_workgroup_id_x 1
  .amdhsa_float_denorm_mode_32 3
.end_amdhsa_kernel
""".format(n=NAME)
path = sys.argv[1] if len(sys.argv) > 1 else "cdna_kernels/%s.s" % NAME
open(path, "w").write(text)
print("wrote", path, len(out), "lines")
```

```python
import sys, os

NAME = "gated_mix__sliding_block_cached__mixer_channel_mlp__decode"
HEADER = open("cdna_kernels/%s.s.ref" % NAME).read().split("; Override launch geometry")[0]

LDS_BYTES = 128 * 1024
WQ = 0x0000; W1 = 0x4000; KK = 0x6000; VV = 0xE000; WO = 0x16000; W2 = 0x1A000
SC = 0x1C000
QL = SC; OST = SC + 0x400; OA = SC + 0x500; HAL = SC + 0x700; FR = SC + 0x800; OBUF = SC + 0x1000
QB = 0x10000; HB = 0x90000; SB = 0x110000; OB = 0x120000; PB = 0x220000; WS_END = 0x420000
LIMIT = 20000
STAMP = int(os.environ.get("STAMP", "0"))
DBG = int(os.environ.get("DBG", "0"))
if STAMP: WS_END = 0x900000

out = []
def e(s=""):
    out.append("    " + s if s and not s.endswith(":") else s)
def nop(n):
    while n > 0:
        k = min(n, 16)
        e("s_nop %d" % (k - 1)); n -= k
def vr(a, n): return "v[%d:%d]" % (a, a + n - 1)
def sr(a, n): return "s[%d:%d]" % (a, a + n - 1)

sKVH, sJ, sB, sS, sW, sRB, sCB, sT, sCNT = 4, 5, 6, 7, 8, 9, 10, 11, 12
SX, SK, SV, SWQ, SWO, SW1, SB1, SW2, SB2, SGW, SOUT, SWS = 44, 48, 52, 56, 60, 64, 68, 72, 76, 80, 84, 88
vLANE, vG, vN, vB4 = 1, 2, 3, 4
vGATE, vB1, vB2, vR = 16, 17, 18, 19
vQP, vHP, vT16, vL16, vL8, vL32, vZ, vPP = 244, 245, 246, 247, 248, 249, 250, 251
PRETOUCH = int(os.environ.get("PRETOUCH", "0"))
NPT = 28 if PRETOUCH else 0
XF, XM, XA, GW = 20, 36, 44, 60
KF, VF = 76, 108
QF = 140
G0 = 156
T0 = 220

stamp_n = [0]
def stamp(extra=None):
    if not STAMP: return
    k = stamp_n[0]; stamp_n[0] += 1
    e("s_memrealtime s[96:97]")
    e("s_lshl_b32 s98, s2, 2")
    e("s_add_u32 s98, s98, s%d" % sW)
    e("s_lshl_b32 s98, s98, 7")
    e("s_add_u32 s98, s98, 0x800000")
    e("s_waitcnt lgkmcnt(0)")
    e("v_mov_b32 v252, s96")
    e("v_mov_b32 v253, %s" % (extra if extra else "0"))
    e("v_mov_b32 v254, 0")
    e("buffer_store_dwordx2 v[252:253], v254, s[88:91], s98 offen offset:%d" % (8 * k))

def rbf(dst, src, tmp):
    e("v_cvt_pk_bf16_f32 v%d, v%d, v%d" % (tmp, src, src))
    e("v_lshlrev_b32 v%d, 16, v%d" % (dst, tmp))

def allreduce_rows(op, vs, t):
    for sw in ("v_permlane16_swap_b32", "v_permlane32_swap_b32"):
        for i, v in enumerate(vs):
            e("v_mov_b32 v%d, v%d" % (t + i, v))
        nop(max(0, 3 - len(vs)))
        for i, v in enumerate(vs):
            e("%s v%d, v%d" % (sw, v, t + i))
        for i, v in enumerate(vs):
            e("%s v%d, v%d, v%d" % (op, v, v, t + i))

def allreduce_ror(op, vs):
    for r in (4, 8):
        nop(2 if r == 4 else max(0, 3 - len(vs)))
        for v in vs:
            e("%s_dpp v%d, v%d, v%d row_ror:%d row_mask:0xf bank_mask:0xf" % (op, v, v, v, r))

def tagtest(tags, vmin, vmax):
    t = list(tags)
    for op, acc in (("v_min3_u32", vmin), ("v_max3_u32", vmax)):
        r = list(t)
        e("%s v%d, v%d, v%d, v%d" % (op, acc, r[0], r[1], r[2])); r = r[3:]
        while len(r) >= 2:
            e("%s v%d, v%d, v%d, v%d" % (op, acc, acc, r[0], r[1])); r = r[2:]
        if r:
            e("%s v%d, v%d, v%d" % (op.replace("3_", "_"), acc, acc, r[0]))
    e("v_xor_b32 v%d, s%d, v%d" % (vmin, sT, vmin))
    e("v_xor_b32 v%d, s%d, v%d" % (vmax, sT, vmax))
    e("v_or_b32 v%d, v%d, v%d" % (vmin, vmin, vmax))
    e("v_cmp_ne_u32 vcc, 0, v%d" % vmin)

def loopctl(label, done):
    e("s_add_u32 s%d, s%d, 1" % (sCNT, sCNT))
    e("s_cmp_lt_u32 s%d, %d" % (sCNT, LIMIT))
    e("s_cbranch_scc0 %s" % done)
    e("s_cbranch_vccnz %s" % label)
    e("%s:" % done)

def dma(srd, vaddr, soff, ldsaddr_s, flags=" nt"):
    e("s_mov_b32 m0, s%d" % ldsaddr_s)
    e("s_nop 0")
    e("buffer_load_dwordx4 v%d, %s, s%d offen%s lds" % (vaddr, sr(srd, 4), soff, flags))

def mfma(d, a, b, first):
    e("v_mfma_f32_16x16x32_bf16 %s, %s, %s, %s" % (vr(d, 4), vr(a, 4), vr(b, 4), "0" if first else vr(d, 4)))

def select_g(dst, src):
    e("v_cndmask_b32 v%d, v%d, v%d, s[20:21]" % (dst, src, src + 1))
    e("v_cndmask_b32 v%d, v%d, v%d, s[22:23]" % (dst, dst, src + 2))
    e("v_cndmask_b32 v%d, v%d, v%d, s[24:25]" % (dst, dst, src + 3))

def body():
    e("s_cmp_ge_u32 s2, 256")
    e("s_cbranch_scc1 L_end")
    e("s_load_dwordx16 s[16:31], s[0:1], 0")
    e("s_load_dwordx8 s[32:39], s[0:1], 64")
    e("s_load_dwordx4 s[40:43], s[0:1], 96")
    e("v_and_b32 v%d, 63, v0" % vLANE)
    e("v_lshrrev_b32 v5, 6, v0")
    e("v_lshrrev_b32 v%d, 4, v%d" % (vG, vLANE))
    e("v_and_b32 v%d, 15, v0" % vN)
    e("v_and_b32 v%d, 3, v0" % vB4)
    e("v_readfirstlane_b32 s%d, v5" % sW)
    e("v_bfe_u32 v%d, v0, 2, 2" % vR)
    e("s_and_b32 s%d, s2, 7" % sKVH)
    e("s_lshr_b32 s%d, s2, 3" % sJ)
    e("s_lshr_b32 s%d, s%d, 3" % (sB, sJ))
    e("s_and_b32 s%d, s%d, 7" % (sS, sJ))
    e("s_lshl_b32 s%d, s%d, 3" % (sRB, sKVH))
    e("s_add_u32 s%d, s%d, s%d" % (sRB, sRB, sS))
    e("s_mov_b32 s%d, s%d" % (sCB, sB))
    e("s_waitcnt lgkmcnt(0)")
    e("s_load_dword s%d, s[42:43], 0" % sT)
    srds = [(SX, 16, 4096), (SK, 18, 33554432), (SV, 20, 33554432), (SWQ, 22, 4194304), (SWO, 24, 4194304),
            (SW1, 28, 1835008), (SB1, 30, 3584), (SW2, 32, 1835008), (SB2, 34, 1024), (SGW, 36, 1024),
            (SOUT, 38, 4096), (SWS, 42, WS_END)]
    for d, p, n in srds:
        e("s_mov_b32 s%d, s%d" % (d, p))
        e("s_and_b32 s%d, s%d, 0xffff" % (d + 1, p + 1))
        e("s_mov_b32 s%d, %d" % (d + 2, n))
        e("s_mov_b32 s%d, 0x00020000" % (d + 3))
    stamp()
    if DBG:
        e("s_memrealtime s[92:93]")
        e("s_memtime s[94:95]")
        e("s_mov_b32 s96, s40"); e("s_and_b32 s97, s41, 0xffff"); e("s_mov_b32 s98, 256"); e("s_mov_b32 s99, 0x00020000")
    e("v_lshrrev_b32 v5, 3, v%d" % vLANE)
    e("v_and_b32 v6, 7, v%d" % vLANE)
    e("v_lshrrev_b32 v7, 4, v%d" % vLANE)
    e("v_and_b32 v7, 1, v7")
    e("v_lshlrev_b32 v7, 1, v7")
    e("v_xor_b32 v6, v6, v7")
    e("v_xor_b32 v7, 4, v6")
    e("v_lshlrev_b32 v8, 13, v5")
    e("v_lshl_add_u32 v9, v7, 4, v8")
    e("v_lshl_add_u32 v8, v6, 4, v8")
    e("s_lshl_b32 s16, s%d, 20" % sB)
    e("s_lshl_b32 s17, s%d, 18" % sW)
    e("s_add_u32 s16, s16, s17")
    e("s_lshl_b32 s17, s%d, 7" % sRB)
    e("s_add_u32 s16, s16, s17")
    e("s_lshl_b32 s18, s%d, 12" % sW)
    for t in range(4):
        dma(SWQ, 8 + (t & 1), 16, 18)
        if t < 3:
            e("s_add_u32 s16, s16, %d" % (8 * 8192))
            e("s_add_u32 s18, s18, 1024")
    e("s_lshl_b32 s13, s%d, 8" % sB)
    e("v_lshlrev_b32 v10, 10, v%d" % vB4)
    e("v_lshl_add_u32 v10, v%d, 4, v10" % vG)
    for kk in range(4):
        e("buffer_load_dwordx4 %s, v10, %s, s13 offen offset:%d" % (vr(XF + 4 * kk, 4), sr(SX, 4), 64 * kk))
    e("s_lshl_b32 s13, s%d, 7" % sKVH)
    for kk in range(2):
        e("buffer_load_dwordx4 %s, v10, %s, s13 offen offset:%d" % (vr(XM + 4 * kk, 4), sr(SX, 4), 64 * kk))
    e("v_lshrrev_b32 v11, 2, v%d" % vLANE)
    e("v_lshlrev_b32 v11, 6, v11")
    e("v_lshl_add_u32 v12, v%d, 10, v11" % vB4)
    for k in range(4):
        e("buffer_load_dwordx4 %s, v12, %s, 0 offen offset:%d" % (vr(XA + 4 * k, 4), sr(SX, 4), 16 * k))
    for k in range(4):
        e("buffer_load_dwordx4 %s, v11, %s, 0 offen offset:%d" % (vr(GW + 4 * k, 4), sr(SGW, 4), 16 * k))
    e("s_mul_i32 s13, s%d, 56" % sRB)
    e("v_lshlrev_b32 v11, 1, v%d" % vLANE)
    e("buffer_load_ushort v%d, v11, %s, s13 offen" % (vB1, sr(SB1, 4)))
    e("s_lshl_b32 s13, s%d, 8" % sCB)
    e("s_lshl_b32 s14, s%d, 2" % sRB)
    e("s_add_u32 s13, s13, s14")
    e("v_and_b32 v11, 1, v%d" % vR)
    e("v_lshlrev_b32 v11, 1, v11")
    e("buffer_load_ushort v%d, v11, %s, s13 offen" % (vB2, sr(SB2, 4)))
    e("s_cmp_ge_u32 s%d, 28" % sJ)
    e("s_cbranch_scc1 L_now1")
    e("s_mov_b32 s15, 3584")
    e("v_mul_lo_u32 v8, v5, s15")
    e("v_lshl_add_u32 v9, v7, 4, v8")
    e("v_lshl_add_u32 v8, v6, 4, v8")
    e("s_mul_i32 s16, s%d, %d" % (sKVH, 64 * 3584))
    e("s_mul_i32 s17, s%d, %d" % (sW, 16 * 3584))
    e("s_add_u32 s16, s16, s17")
    e("s_lshl_b32 s17, s%d, 7" % sJ)
    e("s_add_u32 s16, s16, s17")
    e("s_lshl_b32 s18, s%d, 11" % sW)
    e("s_add_u32 s18, s18, %d" % W1)
    for t in range(2):
        dma(SW1, 8 + t, 16, 18)
        if t == 0:
            e("s_add_u32 s16, s16, %d" % (8 * 3584))
            e("s_add_u32 s18, s18, 1024")
    e("L_now1:")
    e("s_lshl_b32 s16, s%d, 3" % sB)
    e("s_add_u32 s16, s16, s%d" % sKVH)
    e("s_lshl_b32 s16, s16, 12")
    e("s_lshl_b32 s17, s%d, 7" % sS)
    e("s_add_u32 s16, s16, s17")
    e("s_lshl_b32 s17, s%d, 5" % sW)
    e("s_add_u32 s16, s16, s17")
    e("s_add_u32 s16, s16, 3072")
    e("s_lshl_b32 s16, s16, 8")
    e("s_mov_b32 s17, s16")
    e("v_xor_b32 v5, v%d, v%d" % (vN, vG))
    e("v_lshlrev_b32 v5, 4, v5")
    e("v_lshl_add_u32 v5, v%d, 8, v5" % vG)
    e("v_xor_b32 v6, 64, v5")
    e("v_xor_b32 v7, 0x80, v5")
    e("v_xor_b32 v8, 0xc0, v5")
    e("s_lshl_b32 s18, s%d, 13" % sW)
    e("s_add_u32 s18, s18, %d" % KK)
    for t in range(8):
        dma(SK, 5 + (t & 3), 16, 18)
        e("s_add_u32 s16, s16, 1024")
        e("s_add_u32 s18, s18, 1024")
    e("v_lshlrev_b32 v7, 1, v%d" % vG)
    e("v_xor_b32 v5, v%d, v7" % vN)
    e("v_xor_b32 v6, 8, v5")
    e("v_lshlrev_b32 v5, 4, v5")
    e("v_lshlrev_b32 v6, 4, v6")
    e("v_lshl_add_u32 v5, v%d, 8, v5" % vG)
    e("v_lshl_add_u32 v6, v%d, 8, v6" % vG)
    e("s_lshl_b32 s18, s%d, 13" % sW)
    e("s_add_u32 s18, s18, %d" % VV)
    for t in range(8):
        dma(SV, 5 + (t & 1), 17, 18)
        if t < 7:
            e("s_add_u32 s17, s17, 1024")
            e("s_add_u32 s18, s18, 1024")
    e("v_lshlrev_b32 v7, 1, v%d" % vG)
    e("v_xor_b32 v5, v%d, v7" % vN)
    e("v_xor_b32 v6, 8, v5")
    e("s_and_b32 s14, s%d, 1" % sW)
    e("s_lshl_b32 s14, s14, 3")
    e("v_xor_b32 v7, s14, v5")
    e("v_lshlrev_b32 v5, 4, v5")
    e("v_lshlrev_b32 v6, 4, v6")
    e("v_lshlrev_b32 v7, 4, v7")
    e("v_lshl_add_u32 v5, v%d, 10, v5" % vG)
    e("v_lshl_add_u32 v6, v%d, 10, v6" % vG)
    e("v_lshl_add_u32 v7, v%d, 10, v7" % vG)
    e("s_lshl_b32 s15, s%d, 8" % sCB)
    e("s_lshl_b32 s16, s%d, 16" % sRB)
    e("s_add_u32 s16, s16, s15")
    e("s_lshl_b32 s17, s%d, 14" % sW)
    e("s_add_u32 s16, s16, s17")
    e("s_lshl_b32 s18, s%d, 12" % sW)
    e("s_add_u32 s18, s18, %d" % WO)
    e("s_mul_i32 s19, s%d, %d" % (sRB, 28 * 1024))
    e("s_add_u32 s19, s19, s15")
    e("s_lshl_b32 s17, s%d, 13" % sW)
    e("s_add_u32 s19, s19, s17")
    e("s_lshl_b32 s17, s%d, 11" % sW)
    e("s_add_u32 s17, s17, %d" % W2)
    for t in range(4):
        dma(SWO, 5 + (t >> 1), 16, 18)
        if t < 3:
            e("s_add_u32 s16, s16, 4096")
            e("s_add_u32 s18, s18, 1024")
    for t in range(2):
        dma(SW2, 7, 19, 17)
        if t < 1:
            e("s_add_u32 s19, s19, 4096")
            e("s_add_u32 s17, s17, 1024")
    e("s_lshl_b32 s26, s%d, 15" % sB)
    e("s_lshl_b32 s14, s%d, 12" % sKVH)
    e("s_add_u32 s26, s26, s14")
    e("s_add_u32 s26, s26, %d" % QB)
    e("s_add_u32 s27, s26, 0x20000")
    e("s_add_u32 s28, s26, 0x40000")
    e("s_add_u32 s29, s26, 0x60000")
    e("s_lshl_b32 s30, s%d, 17" % sB)
    e("s_lshl_b32 s14, s%d, 9" % sRB)
    e("s_add_u32 s30, s30, s14")
    e("s_lshl_b32 s14, s%d, 7" % sW)
    e("s_add_u32 s30, s30, s14")
    e("s_add_u32 s30, s30, %d" % QB)
    e("s_lshl_b32 s31, s%d, 16" % sKVH)
    e("s_lshl_b32 s15, s%d, 9" % sJ)
    e("s_add_u32 s31, s31, s15")
    e("s_add_u32 s31, s31, s14")
    e("s_add_u32 s31, s31, %d" % HB)
    e("s_lshl_b32 s13, s%d, 3" % sB)
    e("s_add_u32 s13, s13, s%d" % sKVH)
    e("s_lshl_b32 s32, s13, 3")
    e("s_add_u32 s32, s32, s%d" % sS)
    e("s_lshl_b32 s32, s32, 12")
    e("s_lshl_b32 s16, s%d, 10" % sW)
    e("s_add_u32 s32, s32, s16")
    e("s_add_u32 s32, s32, %d" % OB)
    e("s_lshl_b32 s33, s13, 2")
    e("s_add_u32 s33, s33, s%d" % sW)
    e("s_lshl_b32 s33, s33, 3")
    e("s_add_u32 s33, s33, s%d" % sS)
    e("s_lshl_b32 s33, s33, 4")
    e("s_add_u32 s33, s33, %d" % SB)
    e("s_lshl_b32 s13, s%d, 3" % sW)
    e("s_add_u32 s13, s13, s%d" % sKVH)
    e("s_lshr_b32 s17, s%d, 1" % sS)
    e("s_lshl_b32 s34, s13, 15")
    e("s_lshl_b32 s16, s17, 10")
    e("s_add_u32 s34, s34, s16")
    e("s_and_b32 s16, s%d, 1" % sS)
    e("s_lshl_b32 s16, s16, 9")
    e("s_add_u32 s34, s34, s16")
    e("s_add_u32 s34, s34, %d" % OB)
    e("s_lshl_b32 s35, s13, 2")
    e("s_add_u32 s35, s35, s17")
    e("s_lshl_b32 s35, s35, 7")
    e("s_add_u32 s35, s35, %d" % SB)
    e("s_mul_i32 s36, s%d, 224" % sRB)
    e("s_lshl_b32 s14, s%d, 14" % sW)
    e("s_add_u32 s36, s36, s14")
    e("s_add_u32 s36, s36, %d" % HB)
    e("s_lshl_b32 s37, s%d, 19" % sCB)
    e("s_lshl_b32 s15, s%d, 17" % sW)
    e("s_add_u32 s39, s37, %d" % PB)
    e("s_add_u32 s37, s37, s15")
    e("s_lshl_b32 s15, s%d, 7" % sRB)
    e("s_add_u32 s37, s37, s15")
    e("s_add_u32 s37, s37, %d" % PB)
    e("s_add_u32 s38, s37, 65536")
    e("s_lshl_b32 s15, s%d, 13" % sRB)
    e("s_add_u32 s39, s39, s15")
    e("s_lshl_b32 s15, s%d, 11" % sW)
    e("s_add_u32 s39, s39, s15")
    e("v_lshlrev_b32 v%d, 15, v%d" % (vQP, vG))
    e("v_lshl_add_u32 v%d, v%d, 3, v%d" % (vQP, vN, vQP))
    e("v_lshlrev_b32 v%d, 14, v%d" % (vHP, vG))
    e("v_lshl_add_u32 v%d, v%d, 3, v%d" % (vHP, vN, vHP))
    e("v_lshlrev_b32 v%d, 4, v0" % vT16)
    e("v_lshlrev_b32 v%d, 4, v%d" % (vL16, vLANE))
    e("v_lshlrev_b32 v%d, 3, v%d" % (vL8, vLANE))
    e("v_lshlrev_b32 v%d, 5, v%d" % (vL32, vLANE))
    e("v_mov_b32 v%d, 0" % vZ)
    e("v_lshrrev_b32 v%d, 1, v%d" % (vPP, vN))
    e("v_lshlrev_b32 v%d, 13, v%d" % (vPP, vPP))
    e("v_and_b32 v6, 1, v%d" % vN)
    e("v_lshl_add_u32 v%d, v6, 6, v%d" % (vPP, vPP))
    e("v_lshl_add_u32 v%d, v%d, 4, v%d" % (vPP, vG, vPP))
    if PRETOUCH:
        D = KF
        def touch(v, so):
            e("buffer_load_dword v%d, v%d, %s, s%d offen sc1" % (D, v, sr(SWS, 4), so))
        for r in range(4): touch(vT16, 26 + r)
        touch(vQP, 30); touch(vHP, 31); touch(vL16, 32); touch(vZ, 33); touch(vZ, 35)
        for k in range(8):
            e("s_add_u32 s18, s34, %d" % (4096 * k)); touch(vL8, 18)
        for k in range(8):
            e("s_add_u32 s18, s36, %d" % (65536 * k)); touch(vL8, 18)
        touch(vPP, 37); touch(vPP, 38); touch(vL32, 39)
    e("v_cmp_eq_u32 s[20:21], 1, v%d" % vG)
    e("v_cmp_eq_u32 s[22:23], 2, v%d" % vG)
    e("v_cmp_eq_u32 s[24:25], 3, v%d" % vG)
    e("s_waitcnt lgkmcnt(0)")
    e("s_add_u32 s%d, s%d, 1" % (sT, sT))
    e("v_lshl_add_u32 v9, v%d, 3, v%d" % (vG, vR))
    e("v_lshlrev_b32 v10, 7, v9")
    e("v_lshl_add_u32 v10, v%d, 3, v10" % vB4)
    e("v_lshrrev_b32 v11, 1, v%d" % vR)
    e("v_and_b32 v12, 1, v%d" % vG)
    e("v_lshl_or_b32 v11, v12, 1, v11")
    e("v_xor_b32 v11, s%d, v11" % sW)
    e("v_lshl_add_u32 v10, v11, 5, v10")
    e("s_waitcnt vmcnt(%d)" % (22 + NPT))
    e("s_barrier")
    stamp()
    BF = G0
    for kk in range(4):
        e("ds_read_b64_tr_b16 %s, v10 offset:%d" % (vr(BF + 4 * kk, 2), WQ + kk * 4096))
        e("ds_read_b64_tr_b16 %s, v10 offset:%d" % (vr(BF + 4 * kk + 2, 2), WQ + kk * 4096 + 512))
    e("v_mov_b32 v%d, s%d" % (T0 + 5, sT))
    e("s_waitcnt lgkmcnt(0)")
    for kk in range(4):
        mfma(T0, XF + 4 * kk, BF + 4 * kk, kk == 0)
    nop(8)
    select_g(T0 + 4, T0)
    e("buffer_store_dwordx2 %s, v%d, %s, s30 offen sc1" % (vr(T0 + 4, 2), vQP, sr(SWS, 4)))
    stamp()
    U = G0
    for k in range(16):
        e("v_lshlrev_b32 v%d, 16, v%d" % (U + 2 * k, XA + k))
        e("v_and_b32 v%d, 0xffff0000, v%d" % (U + 2 * k + 1, XA + k))
    e("v_mov_b32 v12, 0")
    e("v_mov_b32 v13, 0")
    for k in range(16):
        e("v_lshlrev_b32 v14, 16, v%d" % (GW + k))
        e("v_and_b32 v15, 0xffff0000, v%d" % (GW + k))
        e("v_mul_f32 v14, v14, v%d" % (U + 2 * k))
        e("v_mul_f32 v15, v15, v%d" % (U + 2 * k + 1))
        e("v_cvt_pk_bf16_f32 v14, v14, v15")
        e("v_and_b32 v15, 0xffff0000, v14")
        e("v_lshlrev_b32 v14, 16, v14")
        e("v_add_f32 v13, v13, v14")
        e("v_add_f32 v13, v13, v15")
        e("v_add_f32 v12, v12, v%d" % (U + 2 * k))
        e("v_add_f32 v12, v12, v%d" % (U + 2 * k + 1))
    allreduce_ror("v_add_f32", [12, 13])
    allreduce_rows("v_add_f32", [12, 13], 14)
    e("v_mul_f32 v12, 0x3b000000, v12")
    e("v_mov_b32 v11, 0")
    for k in range(32):
        e("v_sub_f32 v14, v%d, v12" % (U + k))
        e("v_fmac_f32 v11, v14, v14")
    allreduce_ror("v_add_f32", [11])
    allreduce_rows("v_add_f32", [11], 14)
    e("v_mul_f32 v11, 0x3b000000, v11")
    rbf(12, 12, 14)
    rbf(11, 11, 14)
    e("v_add_f32 v11, 0x3727c5ac, v11")
    rbf(11, 11, 14)
    e("v_sqrt_f32 v11, v11")
    nop(1)
    rbf(11, 11, 14)
    e("v_rcp_f32 v9, v11")
    rbf(13, 13, 14)
    e("v_mul_f32 v13, 0xbfb8aa3b, v13")
    e("v_exp_f32 v13, v13")
    nop(1)
    e("v_add_f32 v13, 1.0, v13")
    e("v_rcp_f32 v13, v13")
    nop(1)
    rbf(vGATE, 13, 14)
    e("s_cmp_ge_u32 s%d, 28" % sJ)
    e("s_cbranch_scc1 L_hdone")
    for kk in range(2):
        e("ds_read_b64_tr_b16 %s, v10 offset:%d" % (vr(BF + 4 * kk, 2), W1 + kk * 4096))
        e("ds_read_b64_tr_b16 %s, v10 offset:%d" % (vr(BF + 4 * kk + 2, 2), W1 + kk * 4096 + 512))
    for k in range(8):
        x = XM + k
        e("v_lshlrev_b32 v14, 16, v%d" % x)
        e("v_and_b32 v15, 0xffff0000, v%d" % x)
        e("v_sub_f32 v14, v14, v12")
        e("v_sub_f32 v15, v15, v12")
        e("v_cvt_pk_bf16_f32 v14, v14, v15")
        e("v_and_b32 v15, 0xffff0000, v14")
        e("v_lshlrev_b32 v14, 16, v14")
        e("v_mul_f32 v6, v14, v9")
        e("v_mul_f32 v7, v15, v9")
        e("v_fma_f32 v14, -v6, v11, v14")
        e("v_fma_f32 v15, -v7, v11, v15")
        e("v_fma_f32 v6, v14, v9, v6")
        e("v_fma_f32 v7, v15, v9, v7")
        e("v_cvt_pk_bf16_f32 v%d, v6, v7" % x)
    e("s_waitcnt lgkmcnt(0)")
    for kk in range(2):
        mfma(T0, XM + 4 * kk, BF + 4 * kk, kk == 0)
    nop(8)
    select_g(T0 + 4, T0)
    e("buffer_store_dwordx2 %s, v%d, %s, s31 offen sc1" % (vr(T0 + 4, 2), vHP, sr(SWS, 4)))
    e("L_hdone:")
    stamp()
    e("v_xor_b32 v6, v%d, v%d" % (vN, vG))
    e("v_lshlrev_b32 v6, 4, v6")
    e("v_lshl_add_u32 v6, v%d, 8, v6" % vN)
    e("s_lshl_b32 s17, s%d, 13" % sW)
    e("s_add_u32 s17, s17, %d" % KK)
    e("v_add_u32 v6, s17, v6")
    e("v_lshrrev_b32 v8, 2, v%d" % vLANE)
    e("v_and_b32 v9, 7, v8")
    e("v_lshlrev_b32 v9, 5, v9")
    e("v_lshl_add_u32 v9, v8, 8, v9")
    e("v_lshl_add_u32 v9, v%d, 3, v9" % vB4)
    e("s_lshl_b32 s17, s%d, 13" % sW)
    e("s_add_u32 s17, s17, %d" % VV)
    e("v_add_u32 v9, s17, v9")
    e("s_mov_b32 s%d, 0" % sCNT)
    QG = G0
    def p1_issue():
        for r in range(4):
            e("buffer_load_dwordx4 %s, v%d, %s, s%d offen sc1" % (vr(QG + 4 * r, 4), vT16, sr(SWS, 4), 26 + r))
        e("s_waitcnt vmcnt(0)")
    p1_issue()
    for kk in range(4):
        if kk: e("v_xor_b32 v7, %d, v6" % (64 * kk))
        for t in range(2):
            e("ds_read_b128 %s, v%d offset:%d" % (vr(KF + 16 * t + 4 * kk, 4), 7 if kk else 6, 4096 * t))
    for u in range(8):
        if u: e("v_xor_b32 v7, %d, v9" % (u << 5))
        e("ds_read_b64_tr_b16 %s, v%d" % (vr(VF + 4 * u, 2), 7 if u else 9))
        e("ds_read_b64_tr_b16 %s, v%d offset:4096" % (vr(VF + 4 * u + 2, 2), 7 if u else 9))
    tagtest([QG + 2 * k + 1 for k in range(8)], 10, 11)
    e("s_cbranch_vccz L_p1d")
    e("L_p1:")
    p1_issue()
    tagtest([QG + 2 * k + 1 for k in range(8)], 10, 11)
    loopctl("L_p1", "L_p1d")
    e("v_add_f32 v10, v%d, v%d" % (QG, QG + 4))
    e("v_add_f32 v11, v%d, v%d" % (QG + 2, QG + 6))
    e("v_add_f32 v12, v%d, v%d" % (QG + 8, QG + 12))
    e("v_add_f32 v13, v%d, v%d" % (QG + 10, QG + 14))
    e("v_add_f32 v10, v10, v12")
    e("v_add_f32 v11, v11, v13")
    e("v_cvt_pk_bf16_f32 v10, v10, v11")
    e("v_lshlrev_b32 v11, 2, v0")
    e("v_add_u32 v11, %d, v11" % QL)
    e("ds_write_b32 v11, v10")
    e("v_lshlrev_b32 v12, 8, v%d" % vB4)
    e("v_lshl_add_u32 v12, v%d, 4, v12" % vG)
    e("v_add_u32 v12, %d, v12" % QL)
    e("s_waitcnt lgkmcnt(0)")
    e("s_barrier")
    stamp("s%d" % sCNT)
    for kk in range(4):
        e("ds_read_b128 %s, v12 offset:%d" % (vr(QF + 4 * kk, 4), 64 * kk))
    e("s_waitcnt lgkmcnt(0)")
    S = T0
    for t in range(2):
        for kk in range(4):
            mfma(S + 4 * t, KF + 16 * t + 4 * kk, QF + 4 * kk, kk == 0)
    nop(8)
    for k in range(0, 8, 2):
        e("v_cvt_pk_bf16_f32 v14, v%d, v%d" % (S + k, S + k + 1))
        e("v_and_b32 v15, 0xffff0000, v14")
        e("v_lshlrev_b32 v14, 16, v14")
        e("v_mul_f32 v14, 0x3db504f3, v14")
        e("v_mul_f32 v15, 0x3db504f3, v15")
        e("v_cvt_pk_bf16_f32 v14, v14, v15")
        e("v_and_b32 v15, 0xffff0000, v14")
        e("v_lshlrev_b32 v14, 16, v14")
        e("v_mul_f32 v%d, 0x3fb8aa3b, v14" % (S + k))
        e("v_mul_f32 v%d, 0x3fb8aa3b, v15" % (S + k + 1))
    e("v_max3_f32 v12, v%d, v%d, v%d" % (S, S + 1, S + 2))
    e("v_max3_f32 v12, v12, v%d, v%d" % (S + 3, S + 4))
    e("v_max3_f32 v12, v12, v%d, v%d" % (S + 5, S + 6))
    e("v_max_f32 v12, v12, v%d" % (S + 7))
    allreduce_rows("v_max_f32", [12], 14)
    for k in range(8):
        e("v_sub_f32 v%d, v%d, v12" % (S + k, S + k))
    for k in range(8):
        e("v_exp_f32 v%d, v%d" % (S + k, S + k))
    P = T0 + 8
    nop(1)
    for k in range(4):
        e("v_cvt_pk_bf16_f32 v%d, v%d, v%d" % (P + k, S + 2 * k, S + 2 * k + 1))
    e("v_add_f32 v13, v%d, v%d" % (S, S + 1))
    nop(1)
    OACC = G0
    for u in range(8):
        e("v_mfma_f32_16x16x32_bf16 %s, %s, %s, 0" % (vr(OACC + 4 * u, 4), vr(VF + 4 * u, 4), vr(P, 4)))
    for k in range(2, 8):
        e("v_add_f32 v13, v13, v%d" % (S + k))
    allreduce_rows("v_add_f32", [13], 14)
    e("s_lshl_b32 s13, s%d, 11" % sW)
    e("s_add_u32 s13, s13, %d" % OBUF)
    e("v_lshlrev_b32 v5, 9, v%d" % vB4)
    e("v_lshl_add_u32 v5, v%d, 4, v5" % vG)
    e("v_add_u32 v5, s13, v5")
    e("s_lshl_b32 s13, s%d, 5" % sW)
    e("s_add_u32 s13, s13, %d" % OST)
    e("v_lshlrev_b32 v6, 3, v%d" % vB4)
    e("v_add_u32 v6, s13, v6")
    e("ds_write_b64 v6, v[12:13]")
    for u in range(8):
        e("ds_write_b128 v5, %s offset:%d" % (vr(OACC + 4 * u, 4), 64 * u))
    e("s_lshl_b32 s13, s%d, 9" % sW)
    e("s_add_u32 s13, s13, %d" % OBUF)
    e("v_lshlrev_b32 v5, 3, v%d" % vLANE)
    e("v_add_u32 v5, s13, v5")
    e("s_lshl_b32 s13, s%d, 3" % sW)
    e("s_add_u32 s13, s13, %d" % OST)
    e("v_mov_b32 v6, s13")
    e("s_waitcnt lgkmcnt(0)")
    e("s_barrier")
    for w in range(4):
        e("ds_read_b64 %s, v6 offset:%d" % (vr(T0 + 8 + 2 * w, 2), 32 * w))
    for w in range(4):
        e("ds_read_b64 %s, v5 offset:%d" % (vr(T0 + 2 * w, 2), 2048 * w))
    R = T0 + 16
    e("v_mov_b32 v%d, s%d" % (R + 1, sT))
    e("v_mov_b32 v%d, s%d" % (R + 3, sT))
    e("v_mov_b32 v%d, s%d" % (R + 5, sT))
    e("v_mov_b32 v%d, s%d" % (R + 7, sT))
    e("s_waitcnt lgkmcnt(4)")
    M = T0 + 8
    e("v_max3_f32 v%d, v%d, v%d, v%d" % (R + 4, M, M + 2, M + 4))
    e("v_max_f32 v%d, v%d, v%d" % (R + 4, R + 4, M + 6))
    for w in range(4):
        e("v_sub_f32 v%d, v%d, v%d" % (M + 2 * w, M + 2 * w, R + 4))
    for w in range(4):
        e("v_exp_f32 v%d, v%d" % (M + 2 * w, M + 2 * w))
    e("s_waitcnt lgkmcnt(0)")
    e("v_mul_f32 v%d, v%d, v%d" % (R, M, T0))
    e("v_mul_f32 v%d, v%d, v%d" % (R + 2, M, T0 + 1))
    e("v_mul_f32 v%d, v%d, v%d" % (R + 6, M, M + 1))
    for w in range(1, 4):
        e("v_fmac_f32 v%d, v%d, v%d" % (R, M + 2 * w, T0 + 2 * w))
        e("v_fmac_f32 v%d, v%d, v%d" % (R + 2, M + 2 * w, T0 + 2 * w + 1))
        e("v_fmac_f32 v%d, v%d, v%d" % (R + 6, M + 2 * w, M + 2 * w + 1))
    e("buffer_store_dwordx4 %s, v%d, %s, s32 offen sc1" % (vr(R, 4), vL16, sr(SWS, 4)))
    e("buffer_store_dwordx4 %s, v%d, %s, s33 offen sc1" % (vr(R + 4, 4), vZ, sr(SWS, 4)))
    stamp()
    if int(os.environ.get("DELAY2", "0")):
        for _ in range(12): e("s_sleep 32")
        stamp()
    e("v_cmp_lt_u32 s[40:41], 27, v%d" % vLANE)
    OG, ST, HG = G0, G0 + 16, G0 + 48
    e("s_mov_b32 s%d, 0" % sCNT)
    e("L_p2:")
    for s in range(8):
        e("s_add_u32 s18, s34, %d" % (4096 * s))
        e("buffer_load_dwordx2 %s, v%d, %s, s18 offen sc1" % (vr(OG + 2 * s, 2), vL8, sr(SWS, 4)))
    for s in range(8):
        e("buffer_load_dwordx4 %s, v%d, %s, s35 offen offset:%d sc1" % (vr(ST + 4 * s, 4), vZ, sr(SWS, 4), 16 * s))
    for m in range(8):
        e("s_add_u32 s18, s36, %d" % (65536 * m))
        e("buffer_load_dwordx2 %s, v%d, %s, s18 offen sc1" % (vr(HG + 2 * m, 2), vL8, sr(SWS, 4)))
    e("v_mov_b32 v9, s%d" % sT)
    e("s_waitcnt vmcnt(0)")
    for m in range(8):
        e("v_cndmask_b32 v%d, v%d, v9, s[40:41]" % (HG + 2 * m + 1, HG + 2 * m + 1))
    tags = [OG + 2 * s + 1 for s in range(8)] + [ST + 2 * k + 1 for k in range(16)] + [HG + 2 * k + 1 for k in range(8)]
    tagtest(tags, 9, 10)
    loopctl("L_p2", "L_p2d")
    stamp("s%d" % sCNT)
    e("v_max3_f32 v12, v%d, v%d, v%d" % (ST, ST + 4, ST + 8))
    e("v_max3_f32 v12, v12, v%d, v%d" % (ST + 12, ST + 16))
    e("v_max3_f32 v12, v12, v%d, v%d" % (ST + 20, ST + 24))
    e("v_max_f32 v12, v12, v%d" % (ST + 28))
    for s in range(8):
        e("v_sub_f32 v%d, v%d, v12" % (ST + 4 * s, ST + 4 * s))
    for s in range(8):
        e("v_exp_f32 v%d, v%d" % (ST + 4 * s, ST + 4 * s))
    e("v_add_f32 v8, v%d, v%d" % (HG, HG + 2))
    for m in range(2, 8):
        e("v_add_f32 v8, v8, v%d" % (HG + 2 * m))
    e("v_mul_f32 v13, v%d, v%d" % (ST, ST + 2))
    e("v_mul_f32 v14, v%d, v%d" % (ST, OG))
    for s in range(1, 8):
        e("v_fmac_f32 v13, v%d, v%d" % (ST + 4 * s, ST + 4 * s + 2))
        e("v_fmac_f32 v14, v%d, v%d" % (ST + 4 * s, OG + 2 * s))
    e("v_rcp_f32 v15, v13")
    rbf(8, 8, 9)
    e("v_mul_f32 v12, v14, v15")
    e("v_fma_f32 v14, -v12, v13, v14")
    e("v_fma_f32 v12, v14, v15, v12")
    e("v_cvt_pk_bf16_f32 v12, v12, v12")
    e("s_lshl_b32 s13, s%d, 7" % sW)
    e("s_add_u32 s13, s13, %d" % OA)
    e("v_lshlrev_b32 v5, 1, v%d" % vLANE)
    e("v_add_u32 v6, s13, v5")
    e("ds_write_b16 v6, v12")
    e("v_lshlrev_b32 v9, 16, v%d" % vB1)
    e("v_add_f32 v8, v8, v9")
    rbf(8, 8, 9)
    e("v_mul_f32 v9, v8, v8")
    e("v_mul_f32 v9, 0x3d372713, v9")
    e("v_fma_f32 v9, v9, v8, v8")
    e("v_mul_f32 v9, 0x40135761, v9")
    e("v_exp_f32 v9, v9")
    nop(1)
    e("v_add_f32 v9, 1.0, v9")
    e("v_rcp_f32 v9, v9")
    nop(1)
    e("v_fma_f32 v8, -v8, v9, v8")
    e("v_cvt_pk_bf16_f32 v8, v8, v8")
    e("v_cndmask_b32 v8, v8, 0, s[40:41]")
    e("s_lshl_b32 s13, s%d, 6" % sW)
    e("s_add_u32 s13, s13, %d" % HAL)
    e("v_add_u32 v6, s13, v5")
    e("s_mov_b64 exec, 0xffffffff")
    e("ds_write_b16 v6, v8")
    e("s_mov_b64 exec, -1")
    e("v_lshlrev_b32 v5, 7, v%d" % vB4)
    e("v_lshl_add_u32 v5, v%d, 4, v5" % vG)
    e("v_add_u32 v5, %d, v5" % OA)
    e("v_lshlrev_b32 v6, 6, v%d" % vB4)
    e("v_lshl_add_u32 v6, v%d, 4, v6" % vG)
    e("v_add_u32 v6, %d, v6" % HAL)
    e("v_lshl_add_u32 v8, v%d, 3, v%d" % (vG, vR))
    e("v_lshlrev_b32 v8, 8, v8")
    e("v_lshl_add_u32 v8, v%d, 3, v8" % vB4)
    e("v_and_b32 v9, 1, v%d" % vG)
    e("v_lshl_or_b32 v9, v9, 2, v%d" % vR)
    e("s_lshl_b32 s13, s%d, 1" % sW)
    e("v_xor_b32 v9, s13, v9")
    e("v_lshl_add_u32 v8, v9, 5, v8")
    e("v_add_u32 v8, %d, v8" % WO)
    e("v_xor_b32 v9, 32, v8")
    e("s_waitcnt lgkmcnt(0)")
    e("s_barrier")
    HA = T0; AO = T0 + 4
    e("ds_read_b128 %s, v5" % vr(AO, 4))
    e("ds_read_b128 %s, v5 offset:64" % vr(AO + 4, 4))
    e("ds_read_b128 %s, v6" % vr(HA, 4))
    BO = G0; BM = G0 + 16
    for ct in range(2):
        for kk in range(2):
            e("ds_read_b64_tr_b16 %s, v%d offset:%d" % (vr(BO + 8 * ct + 4 * kk, 2), 8 + ct, kk * 8192))
            e("ds_read_b64_tr_b16 %s, v%d offset:%d" % (vr(BO + 8 * ct + 4 * kk + 2, 2), 8 + ct, kk * 8192 + 1024))
        e("ds_read_b64_tr_b16 %s, v%d offset:%d" % (vr(BM + 4 * ct, 2), 8 + ct, W2 - WO))
        e("ds_read_b64_tr_b16 %s, v%d offset:%d" % (vr(BM + 4 * ct + 2, 2), 8 + ct, W2 - WO + 1024))
    RR = G0 + 40
    for k in (1, 3, 5, 7):
        e("v_mov_b32 v%d, s%d" % (RR + k, sT))
    e("s_waitcnt lgkmcnt(0)")
    DA = G0 + 24; DM = G0 + 32
    for ct in range(2):
        for kk in range(2):
            mfma(DA + 4 * ct, AO + 4 * kk, BO + 8 * ct + 4 * kk, kk == 0)
        mfma(DM + 4 * ct, HA, BM + 4 * ct, True)
    nop(5)
    for ct in range(2):
        select_g(RR + 4 * ct, DA + 4 * ct)
        if ct == 1: nop(1)
        select_g(RR + 4 * ct + 2, DM + 4 * ct)
        e("buffer_store_dwordx4 %s, v%d, %s, s%d offen sc1" % (vr(RR + 4 * ct, 4), vPP, sr(SWS, 4), 37 + ct))
    stamp()
    if int(os.environ.get("DELAY2", "0")):
        for _ in range(12): e("s_sleep 32")
        stamp()
    e("s_lshl_b32 s15, s%d, 6" % sW)
    e("s_add_u32 s15, s15, %d" % FR)
    e("v_lshlrev_b32 v6, 4, v%d" % vB4)
    e("v_add_u32 v6, s15, v6")
    F = G0
    e("s_mov_b32 s%d, 0" % sCNT)
    e("L_p3:")
    e("buffer_load_dwordx4 %s, v%d, %s, s39 offen sc1" % (vr(F, 4), vL32, sr(SWS, 4)))
    e("buffer_load_dwordx4 %s, v%d, %s, s39 offen offset:16 sc1" % (vr(F + 4, 4), vL32, sr(SWS, 4)))
    e("s_waitcnt vmcnt(0)")
    tagtest([F + 1, F + 3, F + 5, F + 7], 9, 10)
    loopctl("L_p3", "L_p3d")
    stamp("s%d" % sCNT)
    e("v_mov_b32 v%d, v%d" % (F + 1, F + 2))
    e("v_mov_b32 v%d, v%d" % (F + 2, F + 4))
    e("v_mov_b32 v%d, v%d" % (F + 3, F + 6))
    vs = [F, F + 1, F + 2, F + 3]
    allreduce_ror("v_add_f32", vs)
    allreduce_rows("v_add_f32", vs, F + 8)
    e("ds_write_b128 v6, %s" % vr(F, 4))
    e("s_waitcnt lgkmcnt(0)")
    e("s_barrier")
    e("s_cmp_lg_u32 s%d, 0" % sW)
    e("s_cbranch_scc1 L_end")
    e("v_and_b32 v5, 7, v%d" % vLANE)
    e("v_lshlrev_b32 v5, 3, v5")
    e("v_add_u32 v5, %d, v5" % FR)
    for w in range(4):
        e("ds_read_b64 %s, v5 offset:%d" % (vr(F + 2 * w, 2), 64 * w))
    e("s_lshl_b32 s13, s%d, 8" % sCB)
    e("s_lshl_b32 s14, s%d, 2" % sRB)
    e("s_add_u32 s13, s13, s14")
    e("v_and_b32 v6, 1, v%d" % vR)
    e("v_lshlrev_b32 v6, 1, v6")
    e("v_lshl_add_u32 v6, v%d, 10, v6" % vB4)
    e("v_sub_f32 v12, 1.0, v%d" % vGATE)
    rbf(12, 12, 15)
    e("v_lshlrev_b32 v11, 16, v%d" % vB2)
    e("s_waitcnt lgkmcnt(0)")
    e("v_add_f32 v13, v%d, v%d" % (F, F + 2))
    e("v_add_f32 v14, v%d, v%d" % (F + 1, F + 3))
    e("v_add_f32 v13, v13, v%d" % (F + 4))
    e("v_add_f32 v14, v14, v%d" % (F + 5))
    e("v_add_f32 v13, v13, v%d" % (F + 6))
    e("v_add_f32 v14, v14, v%d" % (F + 7))
    rbf(13, 13, 15)
    rbf(14, 14, 15)
    e("v_add_f32 v14, v14, v11")
    rbf(14, 14, 15)
    e("v_mul_f32 v13, v%d, v13" % vGATE)
    rbf(13, 13, 15)
    e("v_mul_f32 v14, v12, v14")
    rbf(14, 14, 15)
    e("v_add_f32 v13, v13, v14")
    e("v_cvt_pk_bf16_f32 v13, v13, v13")
    e("s_mov_b64 exec, 0xff")
    e("buffer_store_short v13, v6, %s, s13 offen" % sr(SOUT, 4))
    e("s_mov_b64 exec, -1")
    stamp()
    e("s_cmp_lg_u32 s2, 0")
    e("s_cbranch_scc1 L_end")
    e("v_mov_b32 v5, 0")
    e("v_mov_b32 v6, s%d" % sT)
    e("buffer_store_dword v6, v5, %s, 0 offen" % sr(SWS, 4))
    if DBG:
        e("s_memrealtime s[16:17]")
        e("s_memtime s[18:19]")
        e("s_waitcnt lgkmcnt(0)")
        e("s_sub_u32 s16, s16, s92")
        e("s_sub_u32 s18, s18, s94")
        e("v_mov_b32 v6, s16")
        e("v_mov_b32 v7, s18")
        e("buffer_store_dwordx2 v[6:7], v5, s[96:99], 0 offen")
    e("L_end:")
    e("s_endpgm")

body()
text = HEADER + "; @launch grid=(256,1,1) block=(256,1,1) lds=%d\n" % LDS_BYTES
text += """.amdgcn_target "amdgcn-amd-amdhsa--gfx950"
.text
.globl {n}_kernel
.p2align 8
.type {n}_kernel,@function
{n}_kernel:
""".format(n=NAME)
text += "\n".join(out) + "\n"
text += """.section .rodata,"a"
.p2align 6
.amdhsa_kernel {n}_kernel
  .amdhsa_next_free_vgpr 256
  .amdhsa_next_free_sgpr 102
  .amdhsa_accum_offset 256
  .amdhsa_group_segment_fixed_size 0
  .amdhsa_kernarg_size 112
  .amdhsa_user_sgpr_count 2
  .amdhsa_user_sgpr_kernarg_segment_ptr 1
  .amdhsa_system_sgpr_workgroup_id_x 1
  .amdhsa_float_denorm_mode_32 3
.end_amdhsa_kernel
""".format(n=NAME)
path = sys.argv[1] if len(sys.argv) > 1 else "cdna_kernels/%s.s" % NAME
open(path, "w").write(text)
print("wrote", path, len(out), "lines")
```

```python
import sys, os

NAME = "gated_mix__sliding_block_cached__mixer_channel_mlp__decode"
HEADER = open("cdna_kernels/%s.s.ref" % NAME).read().split("; Override launch geometry")[0]

LDS_BYTES = 128 * 1024
WQ = 0x0000; W1 = 0x4000; KK = 0x6000; VV = 0xE000; WO = 0x16000; W2 = 0x1A000
SC = 0x1C000
QL = SC; OST = SC + 0x400; OA = SC + 0x500; HAL = SC + 0x700; FR = SC + 0x800; OBUF = SC + 0x1000
QB = 0x10000; HB = 0x90000; SB = 0x110000; OB = 0x120000; PB = 0x220000; WS_END = 0x420000
LIMIT = 20000
STAMP = int(os.environ.get("STAMP", "0"))
DBG = int(os.environ.get("DBG", "0"))
if STAMP: WS_END = 0x900000

out = []
def e(s=""):
    out.append("    " + s if s and not s.endswith(":") else s)
def nop(n):
    while n > 0:
        k = min(n, 16)
        e("s_nop %d" % (k - 1)); n -= k
def vr(a, n): return "v[%d:%d]" % (a, a + n - 1)
def sr(a, n): return "s[%d:%d]" % (a, a + n - 1)

sKVH, sJ, sB, sS, sW, sRB, sCB, sT, sCNT = 4, 5, 6, 7, 8, 9, 10, 11, 12
SX, SK, SV, SWQ, SWO, SW1, SB1, SW2, SB2, SGW, SOUT, SWS = 44, 48, 52, 56, 60, 64, 68, 72, 76, 80, 84, 88
vLANE, vG, vN, vB4 = 1, 2, 3, 4
vGATE, vB1, vB2, vR = 16, 17, 18, 19
vTA = 243
vQP, vHP, vT16, vL16, vL8, vL32, vZ, vPP = 244, 245, 246, 247, 248, 249, 250, 251
PRETOUCH = int(os.environ.get("PRETOUCH", "0"))
NPT = 28 if PRETOUCH else 0
XF, XM, XA, GW = 20, 36, 44, 60
KF, VF = 76, 108
QF = 140
G0 = 156
T0 = 220

stamp_n = [0]
def stamp(extra=None):
    if not STAMP: return
    k = stamp_n[0]; stamp_n[0] += 1
    e("s_memrealtime s[96:97]")
    e("s_lshl_b32 s98, s2, 2")
    e("s_add_u32 s98, s98, s%d" % sW)
    e("s_lshl_b32 s98, s98, 7")
    e("s_add_u32 s98, s98, 0x800000")
    e("s_waitcnt lgkmcnt(0)")
    e("v_mov_b32 v252, s96")
    e("v_mov_b32 v253, %s" % (extra if extra else "0"))
    e("v_mov_b32 v254, 0")
    e("buffer_store_dwordx2 v[252:253], v254, s[88:91], s98 offen offset:%d" % (8 * k))

def rbf(dst, src, tmp):
    e("v_cvt_pk_bf16_f32 v%d, v%d, v%d" % (tmp, src, src))
    e("v_lshlrev_b32 v%d, 16, v%d" % (dst, tmp))

def allreduce_rows(op, vs, t):
    for sw in ("v_permlane16_swap_b32", "v_permlane32_swap_b32"):
        for i, v in enumerate(vs):
            e("v_mov_b32 v%d, v%d" % (t + i, v))
        nop(max(0, 3 - len(vs)))
        for i, v in enumerate(vs):
            e("%s v%d, v%d" % (sw, v, t + i))
        for i, v in enumerate(vs):
            e("%s v%d, v%d, v%d" % (op, v, v, t + i))

def allreduce_ror(op, vs):
    for r in (4, 8):
        nop(2 if r == 4 else max(0, 3 - len(vs)))
        for v in vs:
            e("%s_dpp v%d, v%d, v%d row_ror:%d row_mask:0xf bank_mask:0xf" % (op, v, v, v, r))

def tagtest(tags, vmin, vmax):
    t = list(tags)
    for op, acc in (("v_min3_u32", vmin), ("v_max3_u32", vmax)):
        r = list(t)
        e("%s v%d, v%d, v%d, v%d" % (op, acc, r[0], r[1], r[2])); r = r[3:]
        while len(r) >= 2:
            e("%s v%d, v%d, v%d, v%d" % (op, acc, acc, r[0], r[1])); r = r[2:]
        if r:
            e("%s v%d, v%d, v%d" % (op.replace("3_", "_"), acc, acc, r[0]))
    e("v_xor_b32 v%d, s%d, v%d" % (vmin, sT, vmin))
    e("v_xor_b32 v%d, s%d, v%d" % (vmax, sT, vmax))
    e("v_or_b32 v%d, v%d, v%d" % (vmin, vmin, vmax))
    e("v_cmp_ne_u32 vcc, 0, v%d" % vmin)

def loopctl(label, done):
    e("s_add_u32 s%d, s%d, 1" % (sCNT, sCNT))
    e("s_cmp_lt_u32 s%d, %d" % (sCNT, LIMIT))
    e("s_cbranch_scc0 %s" % done)
    e("s_cbranch_vccnz %s" % label)
    e("%s:" % done)

def dma(srd, vaddr, soff, ldsaddr_s, flags=" nt"):
    e("s_mov_b32 m0, s%d" % ldsaddr_s)
    e("s_nop 0")
    e("buffer_load_dwordx4 v%d, %s, s%d offen%s lds" % (vaddr, sr(srd, 4), soff, flags))

def mfma(d, a, b, first):
    e("v_mfma_f32_16x16x32_bf16 %s, %s, %s, %s" % (vr(d, 4), vr(a, 4), vr(b, 4), "0" if first else vr(d, 4)))

def select_g(dst, src):
    e("v_cndmask_b32 v%d, v%d, v%d, s[20:21]" % (dst, src, src + 1))
    e("v_cndmask_b32 v%d, v%d, v%d, s[22:23]" % (dst, dst, src + 2))
    e("v_cndmask_b32 v%d, v%d, v%d, s[24:25]" % (dst, dst, src + 3))

def body():
    e("s_cmp_ge_u32 s2, 256")
    e("s_cbranch_scc1 L_end")
    e("s_load_dwordx16 s[16:31], s[0:1], 0")
    e("s_load_dwordx8 s[32:39], s[0:1], 64")
    e("s_load_dwordx4 s[40:43], s[0:1], 96")
    e("v_and_b32 v%d, 63, v0" % vLANE)
    e("v_lshrrev_b32 v5, 6, v0")
    e("v_lshrrev_b32 v%d, 4, v%d" % (vG, vLANE))
    e("v_and_b32 v%d, 15, v0" % vN)
    e("v_and_b32 v%d, 3, v0" % vB4)
    e("v_readfirstlane_b32 s%d, v5" % sW)
    e("v_bfe_u32 v%d, v0, 2, 2" % vR)
    e("s_and_b32 s%d, s2, 7" % sKVH)
    e("s_lshr_b32 s%d, s2, 3" % sJ)
    e("s_lshr_b32 s%d, s%d, 3" % (sB, sJ))
    e("s_and_b32 s%d, s%d, 7" % (sS, sJ))
    e("s_lshl_b32 s%d, s%d, 3" % (sRB, sKVH))
    e("s_add_u32 s%d, s%d, s%d" % (sRB, sRB, sS))
    e("s_mov_b32 s%d, s%d" % (sCB, sB))
    e("s_waitcnt lgkmcnt(0)")
    e("s_load_dword s%d, s[42:43], 0" % sT)
    srds = [(SX, 16, 4096), (SK, 18, 33554432), (SV, 20, 33554432), (SWQ, 22, 4194304), (SWO, 24, 4194304),
            (SW1, 28, 1835008), (SB1, 30, 3584), (SW2, 32, 1835008), (SB2, 34, 1024), (SGW, 36, 1024),
            (SOUT, 38, 4096), (SWS, 42, WS_END)]
    for d, p, n in srds:
        e("s_mov_b32 s%d, s%d" % (d, p))
        e("s_and_b32 s%d, s%d, 0xffff" % (d + 1, p + 1))
        e("s_mov_b32 s%d, %d" % (d + 2, n))
        e("s_mov_b32 s%d, 0x00020000" % (d + 3))
    stamp()
    if DBG:
        e("s_memrealtime s[92:93]")
        e("s_memtime s[94:95]")
        e("s_mov_b32 s96, s40"); e("s_and_b32 s97, s41, 0xffff"); e("s_mov_b32 s98, 256"); e("s_mov_b32 s99, 0x00020000")
    e("s_lshl_b32 s13, s%d, 8" % sB)
    e("v_lshlrev_b32 v10, 10, v%d" % vB4)
    e("v_lshl_add_u32 v10, v%d, 4, v10" % vG)
    for kk in range(4):
        e("buffer_load_dwordx4 %s, v10, %s, s13 offen offset:%d" % (vr(XF + 4 * kk, 4), sr(SX, 4), 64 * kk))
    e("s_lshl_b32 s13, s%d, 7" % sKVH)
    for kk in range(2):
        e("buffer_load_dwordx4 %s, v10, %s, s13 offen offset:%d" % (vr(XM + 4 * kk, 4), sr(SX, 4), 64 * kk))
    e("v_lshrrev_b32 v11, 2, v%d" % vLANE)
    e("v_lshlrev_b32 v11, 6, v11")
    e("v_lshl_add_u32 v12, v%d, 10, v11" % vB4)
    for k in range(4):
        e("buffer_load_dwordx4 %s, v12, %s, 0 offen offset:%d" % (vr(XA + 4 * k, 4), sr(SX, 4), 16 * k))
    for k in range(4):
        e("buffer_load_dwordx4 %s, v11, %s, 0 offen offset:%d" % (vr(GW + 4 * k, 4), sr(SGW, 4), 16 * k))
    e("s_mul_i32 s13, s%d, 56" % sRB)
    e("v_lshlrev_b32 v11, 1, v%d" % vLANE)
    e("buffer_load_ushort v%d, v11, %s, s13 offen" % (vB1, sr(SB1, 4)))
    e("s_lshl_b32 s13, s%d, 8" % sCB)
    e("s_lshl_b32 s14, s%d, 2" % sRB)
    e("s_add_u32 s13, s13, s14")
    e("v_and_b32 v11, 1, v%d" % vR)
    e("v_lshlrev_b32 v11, 1, v11")
    e("buffer_load_ushort v%d, v11, %s, s13 offen" % (vB2, sr(SB2, 4)))
    e("v_lshrrev_b32 v5, 3, v%d" % vLANE)
    e("v_and_b32 v6, 7, v%d" % vLANE)
    e("v_lshrrev_b32 v7, 4, v%d" % vLANE)
    e("v_and_b32 v7, 1, v7")
    e("v_lshlrev_b32 v7, 1, v7")
    e("v_xor_b32 v6, v6, v7")
    e("v_xor_b32 v7, 4, v6")
    e("v_lshlrev_b32 v8, 13, v5")
    e("v_lshl_add_u32 v9, v7, 4, v8")
    e("v_lshl_add_u32 v8, v6, 4, v8")
    e("s_lshl_b32 s16, s%d, 20" % sB)
    e("s_lshl_b32 s17, s%d, 18" % sW)
    e("s_add_u32 s16, s16, s17")
    e("s_lshl_b32 s17, s%d, 7" % sRB)
    e("s_add_u32 s16, s16, s17")
    e("s_lshl_b32 s18, s%d, 12" % sW)
    for t in range(4):
        dma(SWQ, 8 + (t & 1), 16, 18)
        if t < 3:
            e("s_add_u32 s16, s16, %d" % (8 * 8192))
            e("s_add_u32 s18, s18, 1024")
    e("s_min_u32 s14, s%d, 27" % sJ)
    e("s_mov_b32 s15, 3584")
    e("v_mul_lo_u32 v8, v5, s15")
    e("v_lshl_add_u32 v9, v7, 4, v8")
    e("v_lshl_add_u32 v8, v6, 4, v8")
    e("s_mul_i32 s16, s%d, %d" % (sKVH, 64 * 3584))
    e("s_mul_i32 s17, s%d, %d" % (sW, 16 * 3584))
    e("s_add_u32 s16, s16, s17")
    e("s_lshl_b32 s17, s14, 7")
    e("s_add_u32 s16, s16, s17")
    e("s_lshl_b32 s18, s%d, 11" % sW)
    e("s_add_u32 s18, s18, %d" % W1)
    for t in range(2):
        dma(SW1, 8 + t, 16, 18)
        if t == 0:
            e("s_add_u32 s16, s16, %d" % (8 * 3584))
            e("s_add_u32 s18, s18, 1024")
    e("s_lshl_b32 s16, s%d, 3" % sB)
    e("s_add_u32 s16, s16, s%d" % sKVH)
    e("s_lshl_b32 s16, s16, 12")
    e("s_lshl_b32 s17, s%d, 7" % sS)
    e("s_add_u32 s16, s16, s17")
    e("s_lshl_b32 s17, s%d, 5" % sW)
    e("s_add_u32 s16, s16, s17")
    e("s_add_u32 s16, s16, 3072")
    e("s_lshl_b32 s16, s16, 8")
    e("s_mov_b32 s17, s16")
    e("v_xor_b32 v5, v%d, v%d" % (vN, vG))
    e("v_lshlrev_b32 v5, 4, v5")
    e("v_lshl_add_u32 v5, v%d, 8, v5" % vG)
    e("v_xor_b32 v6, 64, v5")
    e("v_xor_b32 v7, 0x80, v5")
    e("v_xor_b32 v8, 0xc0, v5")
    e("s_lshl_b32 s18, s%d, 13" % sW)
    e("s_add_u32 s18, s18, %d" % KK)
    for t in range(8):
        dma(SK, 5 + (t & 3), 16, 18)
        e("s_add_u32 s16, s16, 1024")
        e("s_add_u32 s18, s18, 1024")
    e("v_lshlrev_b32 v7, 1, v%d" % vG)
    e("v_xor_b32 v5, v%d, v7" % vN)
    e("v_xor_b32 v6, 8, v5")
    e("v_lshlrev_b32 v5, 4, v5")
    e("v_lshlrev_b32 v6, 4, v6")
    e("v_lshl_add_u32 v5, v%d, 8, v5" % vG)
    e("v_lshl_add_u32 v6, v%d, 8, v6" % vG)
    e("s_lshl_b32 s18, s%d, 13" % sW)
    e("s_add_u32 s18, s18, %d" % VV)
    for t in range(8):
        dma(SV, 5 + (t & 1), 17, 18)
        if t < 7:
            e("s_add_u32 s17, s17, 1024")
            e("s_add_u32 s18, s18, 1024")
    e("s_lshl_b32 s26, s%d, 15" % sB)
    e("s_lshl_b32 s14, s%d, 12" % sKVH)
    e("s_add_u32 s26, s26, s14")
    e("s_add_u32 s26, s26, %d" % QB)
    e("s_add_u32 s27, s26, 0x20000")
    e("s_add_u32 s28, s26, 0x40000")
    e("s_add_u32 s29, s26, 0x60000")
    e("s_lshl_b32 s30, s%d, 17" % sB)
    e("s_lshl_b32 s14, s%d, 9" % sRB)
    e("s_add_u32 s30, s30, s14")
    e("s_lshl_b32 s14, s%d, 7" % sW)
    e("s_add_u32 s30, s30, s14")
    e("s_add_u32 s30, s30, %d" % QB)
    e("s_lshl_b32 s31, s%d, 16" % sKVH)
    e("s_lshl_b32 s15, s%d, 9" % sJ)
    e("s_add_u32 s31, s31, s15")
    e("s_add_u32 s31, s31, s14")
    e("s_add_u32 s31, s31, %d" % HB)
    e("s_lshl_b32 s13, s%d, 3" % sB)
    e("s_add_u32 s13, s13, s%d" % sKVH)
    e("s_lshl_b32 s32, s13, 3")
    e("s_add_u32 s32, s32, s%d" % sS)
    e("s_lshl_b32 s32, s32, 12")
    e("s_lshl_b32 s16, s%d, 10" % sW)
    e("s_add_u32 s32, s32, s16")
    e("s_add_u32 s32, s32, %d" % OB)
    e("s_lshl_b32 s33, s13, 2")
    e("s_add_u32 s33, s33, s%d" % sW)
    e("s_lshl_b32 s33, s33, 3")
    e("s_add_u32 s33, s33, s%d" % sS)
    e("s_lshl_b32 s33, s33, 4")
    e("s_add_u32 s33, s33, %d" % SB)
    e("s_lshl_b32 s13, s%d, 3" % sW)
    e("s_add_u32 s13, s13, s%d" % sKVH)
    e("s_lshr_b32 s17, s%d, 1" % sS)
    e("s_lshl_b32 s34, s13, 15")
    e("s_lshl_b32 s16, s17, 10")
    e("s_add_u32 s34, s34, s16")
    e("s_and_b32 s16, s%d, 1" % sS)
    e("s_lshl_b32 s16, s16, 9")
    e("s_add_u32 s34, s34, s16")
    e("s_add_u32 s34, s34, %d" % OB)
    e("s_lshl_b32 s35, s13, 2")
    e("s_add_u32 s35, s35, s17")
    e("s_lshl_b32 s35, s35, 7")
    e("s_add_u32 s35, s35, %d" % SB)
    e("s_mul_i32 s36, s%d, 224" % sRB)
    e("s_lshl_b32 s14, s%d, 14" % sW)
    e("s_add_u32 s36, s36, s14")
    e("s_add_u32 s36, s36, %d" % HB)
    e("s_lshl_b32 s37, s%d, 19" % sCB)
    e("s_lshl_b32 s15, s%d, 17" % sW)
    e("s_add_u32 s39, s37, %d" % PB)
    e("s_add_u32 s37, s37, s15")
    e("s_lshl_b32 s15, s%d, 7" % sRB)
    e("s_add_u32 s37, s37, s15")
    e("s_add_u32 s37, s37, %d" % PB)
    e("s_add_u32 s38, s37, 65536")
    e("s_lshl_b32 s15, s%d, 13" % sRB)
    e("s_add_u32 s39, s39, s15")
    e("s_lshl_b32 s15, s%d, 11" % sW)
    e("s_add_u32 s39, s39, s15")
    e("v_lshlrev_b32 v%d, 15, v%d" % (vQP, vG))
    e("v_lshl_add_u32 v%d, v%d, 3, v%d" % (vQP, vN, vQP))
    e("v_lshlrev_b32 v%d, 14, v%d" % (vHP, vG))
    e("v_lshl_add_u32 v%d, v%d, 3, v%d" % (vHP, vN, vHP))
    e("v_lshlrev_b32 v%d, 4, v0" % vT16)
    e("v_lshlrev_b32 v%d, 4, v%d" % (vL16, vLANE))
    e("v_lshlrev_b32 v%d, 3, v%d" % (vL8, vLANE))
    e("v_lshlrev_b32 v%d, 5, v%d" % (vL32, vLANE))
    e("v_mov_b32 v%d, 0" % vZ)
    e("v_lshrrev_b32 v%d, 1, v%d" % (vPP, vN))
    e("v_lshlrev_b32 v%d, 13, v%d" % (vPP, vPP))
    e("v_and_b32 v6, 1, v%d" % vN)
    e("v_lshl_add_u32 v%d, v6, 6, v%d" % (vPP, vPP))
    e("v_lshl_add_u32 v%d, v%d, 4, v%d" % (vPP, vG, vPP))
    if PRETOUCH:
        D = KF
        def touch(v, so):
            e("buffer_load_dword v%d, v%d, %s, s%d offen sc1" % (D, v, sr(SWS, 4), so))
        for r in range(4): touch(vT16, 26 + r)
        touch(vQP, 30); touch(vHP, 31); touch(vL16, 32); touch(vZ, 33); touch(vZ, 35)
        for k in range(8):
            e("s_add_u32 s18, s34, %d" % (4096 * k)); touch(vL8, 18)
        for k in range(8):
            e("s_add_u32 s18, s36, %d" % (65536 * k)); touch(vL8, 18)
        touch(vPP, 37); touch(vPP, 38); touch(vL32, 39)
    e("v_cmp_eq_u32 s[20:21], 1, v%d" % vG)
    e("v_cmp_eq_u32 s[22:23], 2, v%d" % vG)
    e("v_cmp_eq_u32 s[24:25], 3, v%d" % vG)
    e("s_waitcnt lgkmcnt(0)")
    e("s_add_u32 s%d, s%d, 1" % (sT, sT))
    e("v_lshl_add_u32 v9, v%d, 3, v%d" % (vG, vR))
    e("v_lshlrev_b32 v10, 7, v9")
    e("v_lshl_add_u32 v10, v%d, 3, v10" % vB4)
    e("v_lshrrev_b32 v11, 1, v%d" % vR)
    e("v_and_b32 v12, 1, v%d" % vG)
    e("v_lshl_or_b32 v11, v12, 1, v11")
    e("v_xor_b32 v11, s%d, v11" % sW)
    e("v_lshl_add_u32 v10, v11, 5, v10")
    e("v_mov_b32 v%d, v10" % vTA)
    e("s_waitcnt vmcnt(%d)" % (22 + NPT))
    U = G0
    for k in range(16):
        e("v_lshlrev_b32 v%d, 16, v%d" % (U + 2 * k, XA + k))
        e("v_and_b32 v%d, 0xffff0000, v%d" % (U + 2 * k + 1, XA + k))
    e("v_mov_b32 v12, 0")
    e("v_mov_b32 v13, 0")
    for k in range(16):
        e("v_lshlrev_b32 v14, 16, v%d" % (GW + k))
        e("v_and_b32 v15, 0xffff0000, v%d" % (GW + k))
        e("v_mul_f32 v14, v14, v%d" % (U + 2 * k))
        e("v_mul_f32 v15, v15, v%d" % (U + 2 * k + 1))
        e("v_cvt_pk_bf16_f32 v14, v14, v15")
        e("v_and_b32 v15, 0xffff0000, v14")
        e("v_lshlrev_b32 v14, 16, v14")
        e("v_add_f32 v13, v13, v14")
        e("v_add_f32 v13, v13, v15")
        e("v_add_f32 v12, v12, v%d" % (U + 2 * k))
        e("v_add_f32 v12, v12, v%d" % (U + 2 * k + 1))
    allreduce_ror("v_add_f32", [12, 13])
    allreduce_rows("v_add_f32", [12, 13], 14)
    e("v_mul_f32 v12, 0x3b000000, v12")
    e("v_mov_b32 v11, 0")
    for k in range(32):
        e("v_sub_f32 v14, v%d, v12" % (U + k))
        e("v_fmac_f32 v11, v14, v14")
    allreduce_ror("v_add_f32", [11])
    allreduce_rows("v_add_f32", [11], 14)
    e("v_mul_f32 v11, 0x3b000000, v11")
    rbf(12, 12, 14)
    rbf(11, 11, 14)
    e("v_add_f32 v11, 0x3727c5ac, v11")
    rbf(11, 11, 14)
    e("v_sqrt_f32 v11, v11")
    nop(1)
    rbf(11, 11, 14)
    e("v_rcp_f32 v9, v11")
    rbf(13, 13, 14)
    e("v_mul_f32 v13, 0xbfb8aa3b, v13")
    e("v_exp_f32 v13, v13")
    nop(1)
    e("v_add_f32 v13, 1.0, v13")
    e("v_rcp_f32 v13, v13")
    nop(1)
    rbf(vGATE, 13, 14)
    for k in range(8):
        x = XM + k
        e("v_lshlrev_b32 v14, 16, v%d" % x)
        e("v_and_b32 v15, 0xffff0000, v%d" % x)
        e("v_sub_f32 v14, v14, v12")
        e("v_sub_f32 v15, v15, v12")
        e("v_cvt_pk_bf16_f32 v14, v14, v15")
        e("v_and_b32 v15, 0xffff0000, v14")
        e("v_lshlrev_b32 v14, 16, v14")
        e("v_mul_f32 v6, v14, v9")
        e("v_mul_f32 v7, v15, v9")
        e("v_fma_f32 v14, -v6, v11, v14")
        e("v_fma_f32 v15, -v7, v11, v15")
        e("v_fma_f32 v6, v14, v9, v6")
        e("v_fma_f32 v7, v15, v9, v7")
        e("v_cvt_pk_bf16_f32 v%d, v6, v7" % x)
    e("v_mov_b32 v10, v%d" % vTA)
    e("s_waitcnt vmcnt(%d)" % (16 + NPT))
    e("s_barrier")
    stamp()
    BF = G0
    for kk in range(4):
        e("ds_read_b64_tr_b16 %s, v10 offset:%d" % (vr(BF + 4 * kk, 2), WQ + kk * 4096))
        e("ds_read_b64_tr_b16 %s, v10 offset:%d" % (vr(BF + 4 * kk + 2, 2), WQ + kk * 4096 + 512))
    e("v_mov_b32 v%d, s%d" % (T0 + 5, sT))
    e("s_waitcnt lgkmcnt(0)")
    for kk in range(4):
        mfma(T0, XF + 4 * kk, BF + 4 * kk, kk == 0)
    nop(8)
    select_g(T0 + 4, T0)
    e("buffer_store_dwordx2 %s, v%d, %s, s30 offen sc1" % (vr(T0 + 4, 2), vQP, sr(SWS, 4)))
    stamp()
    e("s_cmp_ge_u32 s%d, 28" % sJ)
    e("s_cbranch_scc1 L_hdone")
    for kk in range(2):
        e("ds_read_b64_tr_b16 %s, v10 offset:%d" % (vr(BF + 16 + 4 * kk, 2), W1 + kk * 4096))
        e("ds_read_b64_tr_b16 %s, v10 offset:%d" % (vr(BF + 16 + 4 * kk + 2, 2), W1 + kk * 4096 + 512))
    e("s_waitcnt lgkmcnt(0)")
    for kk in range(2):
        mfma(T0, XM + 4 * kk, BF + 16 + 4 * kk, kk == 0)
    nop(8)
    select_g(T0 + 4, T0)
    e("buffer_store_dwordx2 %s, v%d, %s, s31 offen sc1" % (vr(T0 + 4, 2), vHP, sr(SWS, 4)))
    e("L_hdone:")
    stamp()
    e("v_xor_b32 v6, v%d, v%d" % (vN, vG))
    e("v_lshlrev_b32 v6, 4, v6")
    e("v_lshl_add_u32 v6, v%d, 8, v6" % vN)
    e("s_lshl_b32 s17, s%d, 13" % sW)
    e("s_add_u32 s17, s17, %d" % KK)
    e("v_add_u32 v6, s17, v6")
    e("v_lshrrev_b32 v8, 2, v%d" % vLANE)
    e("v_and_b32 v9, 7, v8")
    e("v_lshlrev_b32 v9, 5, v9")
    e("v_lshl_add_u32 v9, v8, 8, v9")
    e("v_lshl_add_u32 v9, v%d, 3, v9" % vB4)
    e("s_lshl_b32 s17, s%d, 13" % sW)
    e("s_add_u32 s17, s17, %d" % VV)
    e("v_add_u32 v9, s17, v9")
    e("s_mov_b32 s%d, 0" % sCNT)
    QG = G0
    def p1_issue():
        for r in range(4):
            e("buffer_load_dwordx4 %s, v%d, %s, s%d offen sc1" % (vr(QG + 4 * r, 4), vT16, sr(SWS, 4), 26 + r))
        e("s_waitcnt vmcnt(0)")
    p1_issue()
    for kk in range(4):
        if kk: e("v_xor_b32 v7, %d, v6" % (64 * kk))
        for t in range(2):
            e("ds_read_b128 %s, v%d offset:%d" % (vr(KF + 16 * t + 4 * kk, 4), 7 if kk else 6, 4096 * t))
    for u in range(8):
        if u: e("v_xor_b32 v7, %d, v9" % (u << 5))
        e("ds_read_b64_tr_b16 %s, v%d" % (vr(VF + 4 * u, 2), 7 if u else 9))
        e("ds_read_b64_tr_b16 %s, v%d offset:4096" % (vr(VF + 4 * u + 2, 2), 7 if u else 9))
    tagtest([QG + 2 * k + 1 for k in range(8)], 10, 11)
    e("s_cbranch_vccz L_p1d")
    e("L_p1:")
    p1_issue()
    tagtest([QG + 2 * k + 1 for k in range(8)], 10, 11)
    loopctl("L_p1", "L_p1d")
    e("v_add_f32 v10, v%d, v%d" % (QG, QG + 4))
    e("v_add_f32 v11, v%d, v%d" % (QG + 2, QG + 6))
    e("v_add_f32 v12, v%d, v%d" % (QG + 8, QG + 12))
    e("v_add_f32 v13, v%d, v%d" % (QG + 10, QG + 14))
    e("v_add_f32 v10, v10, v12")
    e("v_add_f32 v11, v11, v13")
    e("v_cvt_pk_bf16_f32 v10, v10, v11")
    e("v_lshlrev_b32 v11, 2, v0")
    e("v_add_u32 v11, %d, v11" % QL)
    e("ds_write_b32 v11, v10")
    e("v_lshlrev_b32 v12, 8, v%d" % vB4)
    e("v_lshl_add_u32 v12, v%d, 4, v12" % vG)
    e("v_add_u32 v12, %d, v12" % QL)
    e("s_waitcnt lgkmcnt(0)")
    e("s_barrier")
    stamp("s%d" % sCNT)
    for kk in range(4):
        e("ds_read_b128 %s, v12 offset:%d" % (vr(QF + 4 * kk, 4), 64 * kk))
    e("v_lshlrev_b32 v7, 1, v%d" % vG)
    e("v_xor_b32 v5, v%d, v7" % vN)
    e("v_xor_b32 v6, 8, v5")
    e("s_and_b32 s14, s%d, 1" % sW)
    e("s_lshl_b32 s14, s14, 3")
    e("v_xor_b32 v7, s14, v5")
    e("v_lshlrev_b32 v5, 4, v5")
    e("v_lshlrev_b32 v6, 4, v6")
    e("v_lshlrev_b32 v7, 4, v7")
    e("v_lshl_add_u32 v5, v%d, 10, v5" % vG)
    e("v_lshl_add_u32 v6, v%d, 10, v6" % vG)
    e("v_lshl_add_u32 v7, v%d, 10, v7" % vG)
    e("s_lshl_b32 s15, s%d, 8" % sCB)
    e("s_lshl_b32 s16, s%d, 16" % sRB)
    e("s_add_u32 s16, s16, s15")
    e("s_lshl_b32 s17, s%d, 14" % sW)
    e("s_add_u32 s16, s16, s17")
    e("s_lshl_b32 s18, s%d, 12" % sW)
    e("s_add_u32 s18, s18, %d" % WO)
    e("s_mul_i32 s19, s%d, %d" % (sRB, 28 * 1024))
    e("s_add_u32 s19, s19, s15")
    e("s_lshl_b32 s17, s%d, 13" % sW)
    e("s_add_u32 s19, s19, s17")
    e("s_lshl_b32 s17, s%d, 11" % sW)
    e("s_add_u32 s17, s17, %d" % W2)
    for t in range(4):
        dma(SWO, 5 + (t >> 1), 16, 18)
        if t < 3:
            e("s_add_u32 s16, s16, 4096")
            e("s_add_u32 s18, s18, 1024")
    for t in range(2):
        dma(SW2, 7, 19, 17)
        if t < 1:
            e("s_add_u32 s19, s19, 4096")
            e("s_add_u32 s17, s17, 1024")
    e("s_waitcnt lgkmcnt(0)")
    S = T0
    for t in range(2):
        for kk in range(4):
            mfma(S + 4 * t, KF + 16 * t + 4 * kk, QF + 4 * kk, kk == 0)
    nop(8)
    for k in range(0, 8, 2):
        e("v_cvt_pk_bf16_f32 v14, v%d, v%d" % (S + k, S + k + 1))
        e("v_and_b32 v15, 0xffff0000, v14")
        e("v_lshlrev_b32 v14, 16, v14")
        e("v_mul_f32 v14, 0x3db504f3, v14")
        e("v_mul_f32 v15, 0x3db504f3, v15")
        e("v_cvt_pk_bf16_f32 v14, v14, v15")
        e("v_and_b32 v15, 0xffff0000, v14")
        e("v_lshlrev_b32 v14, 16, v14")
        e("v_mul_f32 v%d, 0x3fb8aa3b, v14" % (S + k))
        e("v_mul_f32 v%d, 0x3fb8aa3b, v15" % (S + k + 1))
    e("v_max3_f32 v12, v%d, v%d, v%d" % (S, S + 1, S + 2))
    e("v_max3_f32 v12, v12, v%d, v%d" % (S + 3, S + 4))
    e("v_max3_f32 v12, v12, v%d, v%d" % (S + 5, S + 6))
    e("v_max_f32 v12, v12, v%d" % (S + 7))
    allreduce_rows("v_max_f32", [12], 14)
    for k in range(8):
        e("v_sub_f32 v%d, v%d, v12" % (S + k, S + k))
    for k in range(8):
        e("v_exp_f32 v%d, v%d" % (S + k, S + k))
    P = T0 + 8
    nop(1)
    for k in range(4):
        e("v_cvt_pk_bf16_f32 v%d, v%d, v%d" % (P + k, S + 2 * k, S + 2 * k + 1))
    e("v_add_f32 v13, v%d, v%d" % (S, S + 1))
    nop(1)
    OACC = G0
    for u in range(8):
        e("v_mfma_f32_16x16x32_bf16 %s, %s, %s, 0" % (vr(OACC + 4 * u, 4), vr(VF + 4 * u, 4), vr(P, 4)))
    for k in range(2, 8):
        e("v_add_f32 v13, v13, v%d" % (S + k))
    allreduce_rows("v_add_f32", [13], 14)
    e("s_lshl_b32 s13, s%d, 11" % sW)
    e("s_add_u32 s13, s13, %d" % OBUF)
    e("v_lshlrev_b32 v5, 9, v%d" % vB4)
    e("v_lshl_add_u32 v5, v%d, 4, v5" % vG)
    e("v_add_u32 v5, s13, v5")
    e("s_lshl_b32 s13, s%d, 5" % sW)
    e("s_add_u32 s13, s13, %d" % OST)
    e("v_lshlrev_b32 v6, 3, v%d" % vB4)
    e("v_add_u32 v6, s13, v6")
    e("ds_write_b64 v6, v[12:13]")
    for u in range(8):
        e("ds_write_b128 v5, %s offset:%d" % (vr(OACC + 4 * u, 4), 64 * u))
    e("s_lshl_b32 s13, s%d, 9" % sW)
    e("s_add_u32 s13, s13, %d" % OBUF)
    e("v_lshlrev_b32 v5, 3, v%d" % vLANE)
    e("v_add_u32 v5, s13, v5")
    e("s_lshl_b32 s13, s%d, 3" % sW)
    e("s_add_u32 s13, s13, %d" % OST)
    e("v_mov_b32 v6, s13")
    e("s_waitcnt lgkmcnt(0)")
    e("s_barrier")
    for w in range(4):
        e("ds_read_b64 %s, v6 offset:%d" % (vr(T0 + 8 + 2 * w, 2), 32 * w))
    for w in range(4):
        e("ds_read_b64 %s, v5 offset:%d" % (vr(T0 + 2 * w, 2), 2048 * w))
    R = T0 + 16
    e("v_mov_b32 v%d, s%d" % (R + 1, sT))
    e("v_mov_b32 v%d, s%d" % (R + 3, sT))
    e("v_mov_b32 v%d, s%d" % (R + 5, sT))
    e("v_mov_b32 v%d, s%d" % (R + 7, sT))
    e("s_waitcnt lgkmcnt(4)")
    M = T0 + 8
    e("v_max3_f32 v%d, v%d, v%d, v%d" % (R + 4, M, M + 2, M + 4))
    e("v_max_f32 v%d, v%d, v%d" % (R + 4, R + 4, M + 6))
    for w in range(4):
        e("v_sub_f32 v%d, v%d, v%d" % (M + 2 * w, M + 2 * w, R + 4))
    for w in range(4):
        e("v_exp_f32 v%d, v%d" % (M + 2 * w, M + 2 * w))
    e("s_waitcnt lgkmcnt(0)")
    e("v_mul_f32 v%d, v%d, v%d" % (R, M, T0))
    e("v_mul_f32 v%d, v%d, v%d" % (R + 2, M, T0 + 1))
    e("v_mul_f32 v%d, v%d, v%d" % (R + 6, M, M + 1))
    for w in range(1, 4):
        e("v_fmac_f32 v%d, v%d, v%d" % (R, M + 2 * w, T0 + 2 * w))
        e("v_fmac_f32 v%d, v%d, v%d" % (R + 2, M + 2 * w, T0 + 2 * w + 1))
        e("v_fmac_f32 v%d, v%d, v%d" % (R + 6, M + 2 * w, M + 2 * w + 1))
    e("buffer_store_dwordx4 %s, v%d, %s, s32 offen sc1" % (vr(R, 4), vL16, sr(SWS, 4)))
    e("buffer_store_dwordx4 %s, v%d, %s, s33 offen sc1" % (vr(R + 4, 4), vZ, sr(SWS, 4)))
    stamp()
    if int(os.environ.get("DELAY2", "0")):
        for _ in range(12): e("s_sleep 32")
        stamp()
    e("v_cmp_lt_u32 s[40:41], 27, v%d" % vLANE)
    OG, ST, HG = G0, G0 + 16, G0 + 48
    e("s_mov_b32 s%d, 0" % sCNT)
    e("v_lshlrev_b32 v5, 1, v%d" % vLANE)
    e("L_ph:")
    for m in range(8):
        e("s_add_u32 s18, s36, %d" % (65536 * m))
        e("buffer_load_dwordx2 %s, v%d, %s, s18 offen sc1" % (vr(HG + 2 * m, 2), vL8, sr(SWS, 4)))
    e("v_mov_b32 v9, s%d" % sT)
    e("s_waitcnt vmcnt(0)")
    for m in range(8):
        e("v_cndmask_b32 v%d, v%d, v9, s[40:41]" % (HG + 2 * m + 1, HG + 2 * m + 1))
    tagtest([HG + 2 * k + 1 for k in range(8)], 9, 10)
    loopctl("L_ph", "L_phd")
    def o_issue():
        for sp in range(8):
            e("s_add_u32 s18, s34, %d" % (4096 * sp))
            e("buffer_load_dwordx2 %s, v%d, %s, s18 offen sc1" % (vr(OG + 2 * sp, 2), vL8, sr(SWS, 4)))
        e("buffer_load_dwordx4 %s, v11, %s, s35 offen sc1" % (vr(ST, 4), sr(SWS, 4)))
    e("v_and_b32 v11, 7, v%d" % vLANE)
    e("v_lshlrev_b32 v11, 4, v11")
    o_issue()
    e("v_add_f32 v8, v%d, v%d" % (HG, HG + 2))
    for m in range(2, 8):
        e("v_add_f32 v8, v8, v%d" % (HG + 2 * m))
    rbf(8, 8, 9)
    e("v_lshlrev_b32 v9, 16, v%d" % vB1)
    e("v_add_f32 v8, v8, v9")
    rbf(8, 8, 9)
    e("v_mul_f32 v9, v8, v8")
    e("v_mul_f32 v9, 0x3d372713, v9")
    e("v_fma_f32 v9, v9, v8, v8")
    e("v_mul_f32 v9, 0x40135761, v9")
    e("v_exp_f32 v9, v9")
    nop(1)
    e("v_add_f32 v9, 1.0, v9")
    e("v_rcp_f32 v9, v9")
    nop(1)
    e("v_fma_f32 v8, -v8, v9, v8")
    e("v_cvt_pk_bf16_f32 v8, v8, v8")
    e("v_cndmask_b32 v8, v8, 0, s[40:41]")
    e("s_lshl_b32 s13, s%d, 6" % sW)
    e("s_add_u32 s13, s13, %d" % HAL)
    e("v_add_u32 v6, s13, v5")
    e("s_mov_b64 exec, 0xffffffff")
    e("ds_write_b16 v6, v8")
    e("s_mov_b64 exec, -1")
    e("s_mov_b32 s%d, 0" % sCNT)
    otags = [OG + 2 * sp + 1 for sp in range(8)] + [ST + 1, ST + 3]
    e("s_waitcnt vmcnt(0)")
    tagtest(otags, 9, 10)
    e("s_cbranch_vccz L_p2d")
    e("L_p2:")
    o_issue()
    e("s_waitcnt vmcnt(0)")
    tagtest(otags, 9, 10)
    loopctl("L_p2", "L_p2d")
    stamp("s%d" % sCNT)
    e("v_mov_b32 v12, v%d" % ST)
    for m in ("quad_perm:[1,0,3,2]", "quad_perm:[2,3,0,1]", "row_half_mirror"):
        nop(2)
        e("v_max_f32_dpp v12, v12, v12 %s row_mask:0xf bank_mask:0xf" % m)
    e("v_sub_f32 v12, v%d, v12" % ST)
    e("v_exp_f32 v12, v12")
    nop(1)
    e("v_mul_f32 v13, v12, v%d" % (ST + 2))
    for k in range(8):
        e("v_readlane_b32 s%d, v12, %d" % (92 + k if not DBG else 60 + k, k))
    for m in ("quad_perm:[1,0,3,2]", "quad_perm:[2,3,0,1]", "row_half_mirror"):
        nop(2)
        e("v_add_f32_dpp v13, v13, v13 %s row_mask:0xf bank_mask:0xf" % m)
    wb = 92 if not DBG else 60
    e("v_mul_f32 v14, s%d, v%d" % (wb, OG))
    for sp in range(1, 8):
        e("v_fmac_f32 v14, s%d, v%d" % (wb + sp, OG + 2 * sp))
    e("v_rcp_f32 v15, v13")
    nop(1)
    e("v_mul_f32 v12, v14, v15")
    e("v_fma_f32 v14, -v12, v13, v14")
    e("v_fma_f32 v12, v14, v15, v12")
    e("v_cvt_pk_bf16_f32 v12, v12, v12")
    e("s_lshl_b32 s13, s%d, 7" % sW)
    e("s_add_u32 s13, s13, %d" % OA)
    e("v_add_u32 v6, s13, v5")
    e("ds_write_b16 v6, v12")
    e("v_lshlrev_b32 v5, 7, v%d" % vB4)
    e("v_lshl_add_u32 v5, v%d, 4, v5" % vG)
    e("v_add_u32 v5, %d, v5" % OA)
    e("v_lshlrev_b32 v6, 6, v%d" % vB4)
    e("v_lshl_add_u32 v6, v%d, 4, v6" % vG)
    e("v_add_u32 v6, %d, v6" % HAL)
    e("v_lshl_add_u32 v8, v%d, 3, v%d" % (vG, vR))
    e("v_lshlrev_b32 v8, 8, v8")
    e("v_lshl_add_u32 v8, v%d, 3, v8" % vB4)
    e("v_and_b32 v9, 1, v%d" % vG)
    e("v_lshl_or_b32 v9, v9, 2, v%d" % vR)
    e("s_lshl_b32 s13, s%d, 1" % sW)
    e("v_xor_b32 v9, s13, v9")
    e("v_lshl_add_u32 v8, v9, 5, v8")
    e("v_add_u32 v8, %d, v8" % WO)
    e("v_xor_b32 v9, 32, v8")
    e("s_waitcnt lgkmcnt(0)")
    e("s_barrier")
    HA = T0; AO = T0 + 4
    e("ds_read_b128 %s, v5" % vr(AO, 4))
    e("ds_read_b128 %s, v5 offset:64" % vr(AO + 4, 4))
    e("ds_read_b128 %s, v6" % vr(HA, 4))
    BO = G0; BM = G0 + 16
    for ct in range(2):
        for kk in range(2):
            e("ds_read_b64_tr_b16 %s, v%d offset:%d" % (vr(BO + 8 * ct + 4 * kk, 2), 8 + ct, kk * 8192))
            e("ds_read_b64_tr_b16 %s, v%d offset:%d" % (vr(BO + 8 * ct + 4 * kk + 2, 2), 8 + ct, kk * 8192 + 1024))
        e("ds_read_b64_tr_b16 %s, v%d offset:%d" % (vr(BM + 4 * ct, 2), 8 + ct, W2 - WO))
        e("ds_read_b64_tr_b16 %s, v%d offset:%d" % (vr(BM + 4 * ct + 2, 2), 8 + ct, W2 - WO + 1024))
    RR = G0 + 40
    for k in (1, 3, 5, 7):
        e("v_mov_b32 v%d, s%d" % (RR + k, sT))
    e("s_waitcnt lgkmcnt(0)")
    DA = G0 + 24; DM = G0 + 32
    for ct in range(2):
        for kk in range(2):
            mfma(DA + 4 * ct, AO + 4 * kk, BO + 8 * ct + 4 * kk, kk == 0)
        mfma(DM + 4 * ct, HA, BM + 4 * ct, True)
    nop(5)
    for ct in range(2):
        select_g(RR + 4 * ct, DA + 4 * ct)
        if ct == 1: nop(1)
        select_g(RR + 4 * ct + 2, DM + 4 * ct)
        e("buffer_store_dwordx4 %s, v%d, %s, s%d offen sc1" % (vr(RR + 4 * ct, 4), vPP, sr(SWS, 4), 37 + ct))
    stamp()
    if int(os.environ.get("DELAY2", "0")):
        for _ in range(12): e("s_sleep 32")
        stamp()
    e("s_lshl_b32 s15, s%d, 6" % sW)
    e("s_add_u32 s15, s15, %d" % FR)
    e("v_lshlrev_b32 v6, 4, v%d" % vB4)
    e("v_add_u32 v6, s15, v6")
    F = G0
    e("s_mov_b32 s%d, 0" % sCNT)
    e("L_p3:")
    e("buffer_load_dwordx4 %s, v%d, %s, s39 offen sc1" % (vr(F, 4), vL32, sr(SWS, 4)))
    e("buffer_load_dwordx4 %s, v%d, %s, s39 offen offset:16 sc1" % (vr(F + 4, 4), vL32, sr(SWS, 4)))
    e("s_waitcnt vmcnt(0)")
    tagtest([F + 1, F + 3, F + 5, F + 7], 9, 10)
    loopctl("L_p3", "L_p3d")
    stamp("s%d" % sCNT)
    e("v_mov_b32 v%d, v%d" % (F + 1, F + 2))
    e("v_mov_b32 v%d, v%d" % (F + 2, F + 4))
    e("v_mov_b32 v%d, v%d" % (F + 3, F + 6))
    vs = [F, F + 1, F + 2, F + 3]
    allreduce_ror("v_add_f32", vs)
    allreduce_rows("v_add_f32", vs, F + 8)
    e("ds_write_b128 v6, %s" % vr(F, 4))
    e("s_waitcnt lgkmcnt(0)")
    e("s_barrier")
    e("s_cmp_lg_u32 s%d, 0" % sW)
    e("s_cbranch_scc1 L_end")
    e("v_and_b32 v5, 7, v%d" % vLANE)
    e("v_lshlrev_b32 v5, 3, v5")
    e("v_add_u32 v5, %d, v5" % FR)
    for w in range(4):
        e("ds_read_b64 %s, v5 offset:%d" % (vr(F + 2 * w, 2), 64 * w))
    e("s_lshl_b32 s13, s%d, 8" % sCB)
    e("s_lshl_b32 s14, s%d, 2" % sRB)
    e("s_add_u32 s13, s13, s14")
    e("v_and_b32 v6, 1, v%d" % vR)
    e("v_lshlrev_b32 v6, 1, v6")
    e("v_lshl_add_u32 v6, v%d, 10, v6" % vB4)
    e("v_sub_f32 v12, 1.0, v%d" % vGATE)
    rbf(12, 12, 15)
    e("v_lshlrev_b32 v11, 16, v%d" % vB2)
    e("s_waitcnt lgkmcnt(0)")
    e("v_add_f32 v13, v%d, v%d" % (F, F + 2))
    e("v_add_f32 v14, v%d, v%d" % (F + 1, F + 3))
    e("v_add_f32 v13, v13, v%d" % (F + 4))
    e("v_add_f32 v14, v14, v%d" % (F + 5))
    e("v_add_f32 v13, v13, v%d" % (F + 6))
    e("v_add_f32 v14, v14, v%d" % (F + 7))
    rbf(13, 13, 15)
    rbf(14, 14, 15)
    e("v_add_f32 v14, v14, v11")
    rbf(14, 14, 15)
    e("v_mul_f32 v13, v%d, v13" % vGATE)
    rbf(13, 13, 15)
    e("v_mul_f32 v14, v12, v14")
    rbf(14, 14, 15)
    e("v_add_f32 v13, v13, v14")
    e("v_cvt_pk_bf16_f32 v13, v13, v13")
    e("s_mov_b64 exec, 0xff")
    e("buffer_store_short v13, v6, %s, s13 offen" % sr(SOUT, 4))
    e("s_mov_b64 exec, -1")
    stamp()
    e("s_cmp_lg_u32 s2, 0")
    e("s_cbranch_scc1 L_end")
    e("v_mov_b32 v5, 0")
    e("v_mov_b32 v6, s%d" % sT)
    e("buffer_store_dword v6, v5, %s, 0 offen" % sr(SWS, 4))
    if DBG:
        e("s_memrealtime s[16:17]")
        e("s_memtime s[18:19]")
        e("s_waitcnt lgkmcnt(0)")
        e("s_sub_u32 s16, s16, s92")
        e("s_sub_u32 s18, s18, s94")
        e("v_mov_b32 v6, s16")
        e("v_mov_b32 v7, s18")
        e("buffer_store_dwordx2 v[6:7], v5, s[96:99], 0 offen")
    e("L_end:")
    e("s_endpgm")

body()
text = HEADER + "; @launch grid=(256,1,1) block=(256,1,1) lds=%d\n" % LDS_BYTES
text += """.amdgcn_target "amdgcn-amd-amdhsa--gfx950"
.text
.globl {n}_kernel
.p2align 8
.type {n}_kernel,@function
{n}_kernel:
""".format(n=NAME)
text += "\n".join(out) + "\n"
text += """.section .rodata,"a"
.p2align 6
.amdhsa_kernel {n}_kernel
  .amdhsa_next_free_vgpr 256
  .amdhsa_next_free_sgpr 102
  .amdhsa_accum_offset 256
  .amdhsa_group_segment_fixed_size 0
  .amdhsa_kernarg_size 112
  .amdhsa_user_sgpr_count 2
  .amdhsa_user_sgpr_kernarg_segment_ptr 1
  .amdhsa_system_sgpr_workgroup_id_x 1
  .amdhsa_float_denorm_mode_32 3
.end_amdhsa_kernel
""".format(n=NAME)
path = sys.argv[1] if len(sys.argv) > 1 else "cdna_kernels/%s.s" % NAME
open(path, "w").write(text)
print("wrote", path, len(out), "lines")
```

```python
import sys, os

NAME = "gated_mix__sliding_block_cached__mixer_channel_mlp__decode"
HEADER = open("cdna_kernels/%s.s.ref" % NAME).read().split("; Override launch geometry")[0]

LDS_BYTES = 132 * 1024
XL = 0x1F000; GL = 0x20000
WQ = 0x0000; W1 = 0x4000; KK = 0x6000; VV = 0xE000; WO = 0x16000; W2 = 0x1A000
SC = 0x1C000
QL = SC; OST = SC + 0x400; OA = SC + 0x500; HAL = SC + 0x700; FR = SC + 0x800; OBUF = SC + 0x1000
QB = 0x10000; HB = 0x90000; SB = 0x110000; OB = 0x120000; PB = 0x220000; WS_END = 0x420000
LIMIT = 20000
STAMP = int(os.environ.get("STAMP", "0"))
DBG = int(os.environ.get("DBG", "0"))
if STAMP: WS_END = 0x900000

out = []
def e(s=""):
    out.append("    " + s if s and not s.endswith(":") else s)
def nop(n):
    while n > 0:
        k = min(n, 16)
        e("s_nop %d" % (k - 1)); n -= k
def vr(a, n): return "v[%d:%d]" % (a, a + n - 1)
def sr(a, n): return "s[%d:%d]" % (a, a + n - 1)

sKVH, sJ, sB, sS, sW, sRB, sCB, sT, sCNT = 4, 5, 6, 7, 8, 9, 10, 11, 12
SX, SK, SV, SWQ, SWO, SW1, SB1, SW2, SB2, SGW, SOUT, SWS = 44, 48, 52, 56, 60, 64, 68, 72, 76, 80, 84, 88
vLANE, vG, vN, vB4 = 1, 2, 3, 4
vGATE, vB1, vB2, vR = 16, 17, 18, 19
vTA = 243
vQP, vHP, vT16, vL16, vL8, vL32, vZ, vPP = 244, 245, 246, 247, 248, 249, 250, 251
PRETOUCH = int(os.environ.get("PRETOUCH", "0"))
NPT = 28 if PRETOUCH else 0
XF, XM, XA, GW = 20, 36, 44, 60
KF, VF = 76, 108
QF = 140
G0 = 156
T0 = 220

stamp_n = [0]
def stamp(extra=None):
    if not STAMP: return
    k = stamp_n[0]; stamp_n[0] += 1
    e("s_memrealtime s[96:97]")
    e("s_lshl_b32 s98, s2, 2")
    e("s_add_u32 s98, s98, s%d" % sW)
    e("s_lshl_b32 s98, s98, 7")
    e("s_add_u32 s98, s98, 0x800000")
    e("s_waitcnt lgkmcnt(0)")
    e("v_mov_b32 v252, s96")
    e("v_mov_b32 v253, %s" % (extra if extra else "0"))
    e("v_mov_b32 v254, 0")
    e("buffer_store_dwordx2 v[252:253], v254, s[88:91], s98 offen offset:%d" % (8 * k))

def rbf(dst, src, tmp):
    e("v_cvt_pk_bf16_f32 v%d, v%d, v%d" % (tmp, src, src))
    e("v_lshlrev_b32 v%d, 16, v%d" % (dst, tmp))

def allreduce_rows(op, vs, t):
    for sw in ("v_permlane16_swap_b32", "v_permlane32_swap_b32"):
        for i, v in enumerate(vs):
            e("v_mov_b32 v%d, v%d" % (t + i, v))
        nop(max(0, 3 - len(vs)))
        for i, v in enumerate(vs):
            e("%s v%d, v%d" % (sw, v, t + i))
        for i, v in enumerate(vs):
            e("%s v%d, v%d, v%d" % (op, v, v, t + i))

def allreduce_ror(op, vs):
    for r in (4, 8):
        nop(2 if r == 4 else max(0, 3 - len(vs)))
        for v in vs:
            e("%s_dpp v%d, v%d, v%d row_ror:%d row_mask:0xf bank_mask:0xf" % (op, v, v, v, r))

def tagtest(tags, vmin, vmax):
    t = list(tags)
    for op, acc in (("v_min3_u32", vmin), ("v_max3_u32", vmax)):
        r = list(t)
        e("%s v%d, v%d, v%d, v%d" % (op, acc, r[0], r[1], r[2])); r = r[3:]
        while len(r) >= 2:
            e("%s v%d, v%d, v%d, v%d" % (op, acc, acc, r[0], r[1])); r = r[2:]
        if r:
            e("%s v%d, v%d, v%d" % (op.replace("3_", "_"), acc, acc, r[0]))
    e("v_xor_b32 v%d, s%d, v%d" % (vmin, sT, vmin))
    e("v_xor_b32 v%d, s%d, v%d" % (vmax, sT, vmax))
    e("v_or_b32 v%d, v%d, v%d" % (vmin, vmin, vmax))
    e("v_cmp_ne_u32 vcc, 0, v%d" % vmin)

def loopctl(label, done):
    e("s_add_u32 s%d, s%d, 1" % (sCNT, sCNT))
    e("s_cmp_lt_u32 s%d, %d" % (sCNT, LIMIT))
    e("s_cbranch_scc0 %s" % done)
    e("s_cbranch_vccnz %s" % label)
    e("%s:" % done)

def dma(srd, vaddr, soff, ldsaddr_s, flags=" nt"):
    e("s_mov_b32 m0, s%d" % ldsaddr_s)
    e("s_nop 0")
    e("buffer_load_dwordx4 v%d, %s, s%d offen%s lds" % (vaddr, sr(srd, 4), soff, flags))

def mfma(d, a, b, first):
    e("v_mfma_f32_16x16x32_bf16 %s, %s, %s, %s" % (vr(d, 4), vr(a, 4), vr(b, 4), "0" if first else vr(d, 4)))

def select_g(dst, src):
    e("v_cndmask_b32 v%d, v%d, v%d, s[20:21]" % (dst, src, src + 1))
    e("v_cndmask_b32 v%d, v%d, v%d, s[22:23]" % (dst, dst, src + 2))
    e("v_cndmask_b32 v%d, v%d, v%d, s[24:25]" % (dst, dst, src + 3))

KVMODE = os.environ.get("KVMODE", "0")
def kv_base():
    e("s_lshl_b32 s16, s%d, 3" % sB)
    e("s_add_u32 s16, s16, s%d" % sKVH)
    e("s_lshl_b32 s16, s16, 12")
    e("s_lshl_b32 s17, s%d, 7" % sS)
    e("s_add_u32 s16, s16, s17")
    e("s_lshl_b32 s17, s%d, 5" % sW)
    e("s_add_u32 s16, s16, s17")
    e("s_add_u32 s16, s16, 3072")
    e("s_lshl_b32 s16, s16, 8")
    e("s_mov_b32 s17, s16")
def k_dma():
    kv_base()
    e("v_xor_b32 v5, v%d, v%d" % (vN, vG))
    e("v_lshlrev_b32 v5, 4, v5")
    e("v_lshl_add_u32 v5, v%d, 8, v5" % vG)
    e("v_xor_b32 v6, 64, v5")
    e("v_xor_b32 v7, 0x80, v5")
    e("v_xor_b32 v8, 0xc0, v5")
    e("s_lshl_b32 s18, s%d, 13" % sW)
    e("s_add_u32 s18, s18, %d" % KK)
    for t in range(8):
        dma(SK, 5 + (t & 3), 16, 18)
        if t < 7:
            e("s_add_u32 s16, s16, 1024")
            e("s_add_u32 s18, s18, 1024")
def v_dma():
    kv_base()
    e("v_lshlrev_b32 v7, 1, v%d" % vG)
    e("v_xor_b32 v5, v%d, v7" % vN)
    e("v_xor_b32 v6, 8, v5")
    e("v_lshlrev_b32 v5, 4, v5")
    e("v_lshlrev_b32 v6, 4, v6")
    e("v_lshl_add_u32 v5, v%d, 8, v5" % vG)
    e("v_lshl_add_u32 v6, v%d, 8, v6" % vG)
    e("s_lshl_b32 s18, s%d, 13" % sW)
    e("s_add_u32 s18, s18, %d" % VV)
    for t in range(8):
        dma(SV, 5 + (t & 1), 17, 18)
        if t < 7:
            e("s_add_u32 s17, s17, 1024")
            e("s_add_u32 s18, s18, 1024")
def KV_EARLY():
    if KVMODE in ("0", "B"): k_dma()
    if KVMODE == "0": v_dma()
def KV_LATE():
    if KVMODE == "A": k_dma()
    if KVMODE in ("A", "B"): v_dma()
NEARLY = {"0": 16, "B": 8, "A": 0}[KVMODE]

def body():
    e("s_cmp_ge_u32 s2, 256")
    e("s_cbranch_scc1 L_end")
    e("s_load_dwordx16 s[16:31], s[0:1], 0")
    e("s_load_dwordx8 s[32:39], s[0:1], 64")
    e("s_load_dwordx4 s[40:43], s[0:1], 96")
    e("v_and_b32 v%d, 63, v0" % vLANE)
    e("v_lshrrev_b32 v5, 6, v0")
    e("v_lshrrev_b32 v%d, 4, v%d" % (vG, vLANE))
    e("v_and_b32 v%d, 15, v0" % vN)
    e("v_and_b32 v%d, 3, v0" % vB4)
    e("v_readfirstlane_b32 s%d, v5" % sW)
    e("v_bfe_u32 v%d, v0, 2, 2" % vR)
    e("s_and_b32 s%d, s2, 7" % sKVH)
    e("s_lshr_b32 s%d, s2, 3" % sJ)
    e("s_lshr_b32 s%d, s%d, 3" % (sB, sJ))
    e("s_and_b32 s%d, s%d, 7" % (sS, sJ))
    e("s_lshl_b32 s%d, s%d, 3" % (sRB, sKVH))
    e("s_add_u32 s%d, s%d, s%d" % (sRB, sRB, sS))
    e("s_mov_b32 s%d, s%d" % (sCB, sB))
    e("s_waitcnt lgkmcnt(0)")
    e("s_load_dword s%d, s[42:43], 0" % sT)
    srds = [(SX, 16, 4096), (SK, 18, 33554432), (SV, 20, 33554432), (SWQ, 22, 4194304), (SWO, 24, 4194304),
            (SW1, 28, 1835008), (SB1, 30, 3584), (SW2, 32, 1835008), (SB2, 34, 1024), (SGW, 36, 1024),
            (SOUT, 38, 4096), (SWS, 42, WS_END)]
    for d, p, n in srds:
        e("s_mov_b32 s%d, s%d" % (d, p))
        e("s_and_b32 s%d, s%d, 0xffff" % (d + 1, p + 1))
        e("s_mov_b32 s%d, %d" % (d + 2, n))
        e("s_mov_b32 s%d, 0x00020000" % (d + 3))
    stamp()
    if DBG:
        e("s_memrealtime s[92:93]")
        e("s_memtime s[94:95]")
        e("s_mov_b32 s96, s40"); e("s_and_b32 s97, s41, 0xffff"); e("s_mov_b32 s98, 256"); e("s_mov_b32 s99, 0x00020000")
    e("v_lshlrev_b32 v10, 4, v%d" % vLANE)
    e("s_lshl_b32 s13, s%d, 10" % sW)
    e("s_add_u32 s18, s13, %d" % XL)
    dma(SX, 10, 13, 18, flags="")
    e("s_mov_b32 s13, 0")
    e("s_mov_b32 s18, %d" % GL)
    dma(SGW, 10, 13, 18, flags="")
    e("s_mul_i32 s13, s%d, 56" % sRB)
    e("v_lshlrev_b32 v11, 1, v%d" % vLANE)
    e("buffer_load_ushort v%d, v11, %s, s13 offen" % (vB1, sr(SB1, 4)))
    e("s_lshl_b32 s13, s%d, 8" % sCB)
    e("s_lshl_b32 s14, s%d, 2" % sRB)
    e("s_add_u32 s13, s13, s14")
    e("v_and_b32 v11, 1, v%d" % vR)
    e("v_lshlrev_b32 v11, 1, v11")
    e("buffer_load_ushort v%d, v11, %s, s13 offen" % (vB2, sr(SB2, 4)))
    e("v_lshrrev_b32 v5, 3, v%d" % vLANE)
    e("v_and_b32 v6, 7, v%d" % vLANE)
    e("v_lshrrev_b32 v7, 4, v%d" % vLANE)
    e("v_and_b32 v7, 1, v7")
    e("v_lshlrev_b32 v7, 1, v7")
    e("v_xor_b32 v6, v6, v7")
    e("v_xor_b32 v7, 4, v6")
    e("v_lshlrev_b32 v8, 13, v5")
    e("v_lshl_add_u32 v9, v7, 4, v8")
    e("v_lshl_add_u32 v8, v6, 4, v8")
    e("s_lshl_b32 s16, s%d, 20" % sB)
    e("s_lshl_b32 s17, s%d, 18" % sW)
    e("s_add_u32 s16, s16, s17")
    e("s_lshl_b32 s17, s%d, 7" % sRB)
    e("s_add_u32 s16, s16, s17")
    e("s_lshl_b32 s18, s%d, 12" % sW)
    for t in range(4):
        dma(SWQ, 8 + (t & 1), 16, 18)
        if t < 3:
            e("s_add_u32 s16, s16, %d" % (8 * 8192))
            e("s_add_u32 s18, s18, 1024")
    e("s_min_u32 s14, s%d, 27" % sJ)
    e("s_mov_b32 s15, 3584")
    e("v_mul_lo_u32 v8, v5, s15")
    e("v_lshl_add_u32 v9, v7, 4, v8")
    e("v_lshl_add_u32 v8, v6, 4, v8")
    e("s_mul_i32 s16, s%d, %d" % (sKVH, 64 * 3584))
    e("s_mul_i32 s17, s%d, %d" % (sW, 16 * 3584))
    e("s_add_u32 s16, s16, s17")
    e("s_lshl_b32 s17, s14, 7")
    e("s_add_u32 s16, s16, s17")
    e("s_lshl_b32 s18, s%d, 11" % sW)
    e("s_add_u32 s18, s18, %d" % W1)
    for t in range(2):
        dma(SW1, 8 + t, 16, 18)
        if t == 0:
            e("s_add_u32 s16, s16, %d" % (8 * 3584))
            e("s_add_u32 s18, s18, 1024")
    KV_EARLY()
    e("s_lshl_b32 s26, s%d, 15" % sB)
    e("s_lshl_b32 s14, s%d, 12" % sKVH)
    e("s_add_u32 s26, s26, s14")
    e("s_add_u32 s26, s26, %d" % QB)
    e("s_add_u32 s27, s26, 0x20000")
    e("s_add_u32 s28, s26, 0x40000")
    e("s_add_u32 s29, s26, 0x60000")
    e("s_lshl_b32 s30, s%d, 17" % sB)
    e("s_lshl_b32 s14, s%d, 9" % sRB)
    e("s_add_u32 s30, s30, s14")
    e("s_lshl_b32 s14, s%d, 7" % sW)
    e("s_add_u32 s30, s30, s14")
    e("s_add_u32 s30, s30, %d" % QB)
    e("s_lshl_b32 s31, s%d, 16" % sKVH)
    e("s_lshl_b32 s15, s%d, 9" % sJ)
    e("s_add_u32 s31, s31, s15")
    e("s_add_u32 s31, s31, s14")
    e("s_add_u32 s31, s31, %d" % HB)
    e("s_lshl_b32 s13, s%d, 3" % sB)
    e("s_add_u32 s13, s13, s%d" % sKVH)
    e("s_lshl_b32 s32, s13, 3")
    e("s_add_u32 s32, s32, s%d" % sS)
    e("s_lshl_b32 s32, s32, 12")
    e("s_lshl_b32 s16, s%d, 10" % sW)
    e("s_add_u32 s32, s32, s16")
    e("s_add_u32 s32, s32, %d" % OB)
    e("s_lshl_b32 s33, s13, 2")
    e("s_add_u32 s33, s33, s%d" % sW)
    e("s_lshl_b32 s33, s33, 3")
    e("s_add_u32 s33, s33, s%d" % sS)
    e("s_lshl_b32 s33, s33, 4")
    e("s_add_u32 s33, s33, %d" % SB)
    e("s_lshl_b32 s13, s%d, 3" % sW)
    e("s_add_u32 s13, s13, s%d" % sKVH)
    e("s_lshr_b32 s17, s%d, 1" % sS)
    e("s_lshl_b32 s34, s13, 15")
    e("s_lshl_b32 s16, s17, 10")
    e("s_add_u32 s34, s34, s16")
    e("s_and_b32 s16, s%d, 1" % sS)
    e("s_lshl_b32 s16, s16, 9")
    e("s_add_u32 s34, s34, s16")
    e("s_add_u32 s34, s34, %d" % OB)
    e("s_lshl_b32 s35, s13, 2")
    e("s_add_u32 s35, s35, s17")
    e("s_lshl_b32 s35, s35, 7")
    e("s_add_u32 s35, s35, %d" % SB)
    e("s_mul_i32 s36, s%d, 224" % sRB)
    e("s_lshl_b32 s14, s%d, 14" % sW)
    e("s_add_u32 s36, s36, s14")
    e("s_add_u32 s36, s36, %d" % HB)
    e("s_lshl_b32 s37, s%d, 19" % sCB)
    e("s_lshl_b32 s15, s%d, 17" % sW)
    e("s_add_u32 s39, s37, %d" % PB)
    e("s_add_u32 s37, s37, s15")
    e("s_lshl_b32 s15, s%d, 7" % sRB)
    e("s_add_u32 s37, s37, s15")
    e("s_add_u32 s37, s37, %d" % PB)
    e("s_add_u32 s38, s37, 65536")
    e("s_lshl_b32 s15, s%d, 13" % sRB)
    e("s_add_u32 s39, s39, s15")
    e("s_lshl_b32 s15, s%d, 11" % sW)
    e("s_add_u32 s39, s39, s15")
    e("v_lshlrev_b32 v%d, 15, v%d" % (vQP, vG))
    e("v_lshl_add_u32 v%d, v%d, 3, v%d" % (vQP, vN, vQP))
    e("v_lshlrev_b32 v%d, 14, v%d" % (vHP, vG))
    e("v_lshl_add_u32 v%d, v%d, 3, v%d" % (vHP, vN, vHP))
    e("v_lshlrev_b32 v%d, 4, v0" % vT16)
    e("v_lshlrev_b32 v%d, 4, v%d" % (vL16, vLANE))
    e("v_lshlrev_b32 v%d, 3, v%d" % (vL8, vLANE))
    e("v_lshlrev_b32 v%d, 5, v%d" % (vL32, vLANE))
    e("v_mov_b32 v%d, 0" % vZ)
    e("v_lshrrev_b32 v%d, 1, v%d" % (vPP, vN))
    e("v_lshlrev_b32 v%d, 13, v%d" % (vPP, vPP))
    e("v_and_b32 v6, 1, v%d" % vN)
    e("v_lshl_add_u32 v%d, v6, 6, v%d" % (vPP, vPP))
    e("v_lshl_add_u32 v%d, v%d, 4, v%d" % (vPP, vG, vPP))
    if PRETOUCH:
        D = KF
        def touch(v, so):
            e("buffer_load_dword v%d, v%d, %s, s%d offen sc1" % (D, v, sr(SWS, 4), so))
        for r in range(4): touch(vT16, 26 + r)
        touch(vQP, 30); touch(vHP, 31); touch(vL16, 32); touch(vZ, 33); touch(vZ, 35)
        for k in range(8):
            e("s_add_u32 s18, s34, %d" % (4096 * k)); touch(vL8, 18)
        for k in range(8):
            e("s_add_u32 s18, s36, %d" % (65536 * k)); touch(vL8, 18)
        touch(vPP, 37); touch(vPP, 38); touch(vL32, 39)
    e("v_cmp_eq_u32 s[20:21], 1, v%d" % vG)
    e("v_cmp_eq_u32 s[22:23], 2, v%d" % vG)
    e("v_cmp_eq_u32 s[24:25], 3, v%d" % vG)
    e("s_waitcnt lgkmcnt(0)")
    e("s_add_u32 s%d, s%d, 1" % (sT, sT))
    e("v_lshl_add_u32 v9, v%d, 3, v%d" % (vG, vR))
    e("v_lshlrev_b32 v10, 7, v9")
    e("v_lshl_add_u32 v10, v%d, 3, v10" % vB4)
    e("v_lshrrev_b32 v11, 1, v%d" % vR)
    e("v_and_b32 v12, 1, v%d" % vG)
    e("v_lshl_or_b32 v11, v12, 1, v11")
    e("v_xor_b32 v11, s%d, v11" % sW)
    e("v_lshl_add_u32 v10, v11, 5, v10")
    e("v_mov_b32 v%d, v10" % vTA)
    e("v_lshlrev_b32 v10, 10, v%d" % vB4)
    e("v_lshl_add_u32 v10, v%d, 4, v10" % vG)
    e("s_lshl_b32 s13, s%d, 8" % sB)
    e("s_add_u32 s13, s13, %d" % XL)
    e("v_add_u32 v11, s13, v10")
    e("s_lshl_b32 s13, s%d, 7" % sKVH)
    e("s_add_u32 s13, s13, %d" % XL)
    e("v_add_u32 v10, s13, v10")
    e("v_lshrrev_b32 v12, 2, v%d" % vLANE)
    e("v_lshlrev_b32 v12, 6, v12")
    e("v_lshl_add_u32 v13, v%d, 10, v12" % vB4)
    e("v_add_u32 v13, %d, v13" % XL)
    e("v_add_u32 v12, %d, v12" % GL)
    e("s_waitcnt vmcnt(%d)" % (8 + NEARLY + NPT))
    e("s_barrier")
    for k in range(4):
        e("ds_read_b128 %s, v13 offset:%d" % (vr(XA + 4 * k, 4), 16 * k))
    for k in range(4):
        e("ds_read_b128 %s, v12 offset:%d" % (vr(GW + 4 * k, 4), 16 * k))
    for kk in range(2):
        e("ds_read_b128 %s, v10 offset:%d" % (vr(XM + 4 * kk, 4), 64 * kk))
    for kk in range(4):
        e("ds_read_b128 %s, v11 offset:%d" % (vr(XF + 4 * kk, 4), 64 * kk))
    KV_LATE()
    e("s_waitcnt lgkmcnt(0)")
    e("v_mov_b32 v10, v%d" % vTA)
    e("s_waitcnt vmcnt(%d)" % (16 + NPT))
    e("s_barrier")
    stamp()
    BF = G0
    for kk in range(4):
        e("ds_read_b64_tr_b16 %s, v10 offset:%d" % (vr(BF + 4 * kk, 2), WQ + kk * 4096))
        e("ds_read_b64_tr_b16 %s, v10 offset:%d" % (vr(BF + 4 * kk + 2, 2), WQ + kk * 4096 + 512))
    e("v_mov_b32 v%d, s%d" % (T0 + 5, sT))
    e("s_waitcnt lgkmcnt(0)")
    for kk in range(4):
        mfma(T0, XF + 4 * kk, BF + 4 * kk, kk == 0)
    nop(8)
    select_g(T0 + 4, T0)
    e("buffer_store_dwordx2 %s, v%d, %s, s30 offen sc1" % (vr(T0 + 4, 2), vQP, sr(SWS, 4)))
    stamp()
    U = G0
    for k in range(16):
        e("v_lshlrev_b32 v%d, 16, v%d" % (U + 2 * k, XA + k))
        e("v_and_b32 v%d, 0xffff0000, v%d" % (U + 2 * k + 1, XA + k))
    e("v_pk_add_f32 v[12:13], %s, %s" % (vr(U, 2), vr(U + 2, 2)))
    for k in range(2, 16):
        e("v_pk_add_f32 v[12:13], v[12:13], %s" % vr(U + 2 * k, 2))
    e("v_add_f32 v12, v12, v13")
    allreduce_ror("v_add_f32", [12])
    allreduce_rows("v_add_f32", [12], 14)
    e("v_mul_f32 v12, 0x3b000000, v12")
    e("v_mov_b32 v13, v12")
    e("v_mov_b32 v10, 0")
    e("v_mov_b32 v11, 0")
    for k in range(16):
        e("v_pk_add_f32 v[14:15], %s, v[12:13] neg_lo:[0,1] neg_hi:[0,1]" % vr(U + 2 * k, 2))
        e("v_pk_fma_f32 v[10:11], v[14:15], v[14:15], v[10:11]")
    e("v_add_f32 v11, v10, v11")
    allreduce_ror("v_add_f32", [11])
    allreduce_rows("v_add_f32", [11], 14)
    e("v_mul_f32 v11, 0x3b000000, v11")
    rbf(12, 12, 14)
    rbf(11, 11, 14)
    e("v_add_f32 v11, 0x3727c5ac, v11")
    rbf(11, 11, 14)
    e("v_sqrt_f32 v11, v11")
    nop(1)
    rbf(11, 11, 14)
    e("v_rcp_f32 v9, v11")
    for k in range(8):
        x = XM + k
        e("v_lshlrev_b32 v14, 16, v%d" % x)
        e("v_and_b32 v15, 0xffff0000, v%d" % x)
        e("v_sub_f32 v14, v14, v12")
        e("v_sub_f32 v15, v15, v12")
        e("v_cvt_pk_bf16_f32 v14, v14, v15")
        e("v_and_b32 v15, 0xffff0000, v14")
        e("v_lshlrev_b32 v14, 16, v14")
        e("v_mul_f32 v6, v14, v9")
        e("v_mul_f32 v7, v15, v9")
        e("v_fma_f32 v14, -v6, v11, v14")
        e("v_fma_f32 v15, -v7, v11, v15")
        e("v_fma_f32 v6, v14, v9, v6")
        e("v_fma_f32 v7, v15, v9, v7")
        e("v_cvt_pk_bf16_f32 v%d, v6, v7" % x)
    e("v_mov_b32 v10, v%d" % vTA)
    e("s_cmp_ge_u32 s%d, 28" % sJ)
    e("s_cbranch_scc1 L_hdone")
    for kk in range(2):
        e("ds_read_b64_tr_b16 %s, v10 offset:%d" % (vr(BF + 16 + 4 * kk, 2), W1 + kk * 4096))
        e("ds_read_b64_tr_b16 %s, v10 offset:%d" % (vr(BF + 16 + 4 * kk + 2, 2), W1 + kk * 4096 + 512))
    e("s_waitcnt lgkmcnt(0)")
    for kk in range(2):
        mfma(T0, XM + 4 * kk, BF + 16 + 4 * kk, kk == 0)
    nop(8)
    select_g(T0 + 4, T0)
    e("buffer_store_dwordx2 %s, v%d, %s, s31 offen sc1" % (vr(T0 + 4, 2), vHP, sr(SWS, 4)))
    e("L_hdone:")
    stamp()
    e("v_xor_b32 v6, v%d, v%d" % (vN, vG))
    e("v_lshlrev_b32 v6, 4, v6")
    e("v_lshl_add_u32 v6, v%d, 8, v6" % vN)
    e("s_lshl_b32 s17, s%d, 13" % sW)
    e("s_add_u32 s17, s17, %d" % KK)
    e("v_add_u32 v6, s17, v6")
    e("v_lshrrev_b32 v8, 2, v%d" % vLANE)
    e("v_and_b32 v9, 7, v8")
    e("v_lshlrev_b32 v9, 5, v9")
    e("v_lshl_add_u32 v9, v8, 8, v9")
    e("v_lshl_add_u32 v9, v%d, 3, v9" % vB4)
    e("s_lshl_b32 s17, s%d, 13" % sW)
    e("s_add_u32 s17, s17, %d" % VV)
    e("v_add_u32 v9, s17, v9")
    e("s_mov_b32 s%d, 0" % sCNT)
    QG = G0
    def p1_issue(wait=True):
        for r in range(4):
            e("buffer_load_dwordx4 %s, v%d, %s, s%d offen sc1" % (vr(QG + 4 * r, 4), vT16, sr(SWS, 4), 26 + r))
        if wait: e("s_waitcnt vmcnt(0)")
    p1_issue(False)
    e("v_mov_b32 v%d, v6" % (T0 + 20))
    e("v_mov_b32 v%d, v9" % (T0 + 21))
    e("v_lshlrev_b32 v7, 1, v%d" % vG)
    e("v_xor_b32 v5, v%d, v7" % vN)
    e("v_xor_b32 v6, 8, v5")
    e("s_and_b32 s14, s%d, 1" % sW)
    e("s_lshl_b32 s14, s14, 3")
    e("v_xor_b32 v7, s14, v5")
    e("v_lshlrev_b32 v5, 4, v5")
    e("v_lshlrev_b32 v6, 4, v6")
    e("v_lshlrev_b32 v7, 4, v7")
    e("v_lshl_add_u32 v5, v%d, 10, v5" % vG)
    e("v_lshl_add_u32 v6, v%d, 10, v6" % vG)
    e("v_lshl_add_u32 v7, v%d, 10, v7" % vG)
    e("s_lshl_b32 s15, s%d, 8" % sCB)
    e("s_lshl_b32 s16, s%d, 16" % sRB)
    e("s_add_u32 s16, s16, s15")
    e("s_lshl_b32 s17, s%d, 14" % sW)
    e("s_add_u32 s16, s16, s17")
    e("s_lshl_b32 s18, s%d, 12" % sW)
    e("s_add_u32 s18, s18, %d" % WO)
    e("s_mul_i32 s19, s%d, %d" % (sRB, 28 * 1024))
    e("s_add_u32 s19, s19, s15")
    e("s_lshl_b32 s17, s%d, 13" % sW)
    e("s_add_u32 s19, s19, s17")
    e("s_lshl_b32 s17, s%d, 11" % sW)
    e("s_add_u32 s17, s17, %d" % W2)
    for t in range(4):
        dma(SWO, 5 + (t >> 1), 16, 18)
        if t < 3:
            e("s_add_u32 s16, s16, 4096")
            e("s_add_u32 s18, s18, 1024")
    for t in range(2):
        dma(SW2, 7, 19, 17)
        if t < 1:
            e("s_add_u32 s19, s19, 4096")
            e("s_add_u32 s17, s17, 1024")
    e("v_mov_b32 v6, v%d" % (T0 + 20))
    e("v_mov_b32 v9, v%d" % (T0 + 21))
    e("s_waitcnt vmcnt(6)")
    for kk in range(4):
        if kk: e("v_xor_b32 v7, %d, v6" % (64 * kk))
        for t in range(2):
            e("ds_read_b128 %s, v%d offset:%d" % (vr(KF + 16 * t + 4 * kk, 4), 7 if kk else 6, 4096 * t))
    for u in range(8):
        if u: e("v_xor_b32 v7, %d, v9" % (u << 5))
        e("ds_read_b64_tr_b16 %s, v%d" % (vr(VF + 4 * u, 2), 7 if u else 9))
        e("ds_read_b64_tr_b16 %s, v%d offset:4096" % (vr(VF + 4 * u + 2, 2), 7 if u else 9))
    tagtest([QG + 2 * k + 1 for k in range(8)], 10, 11)
    e("s_cbranch_vccz L_p1d")
    e("L_p1:")
    p1_issue()
    tagtest([QG + 2 * k + 1 for k in range(8)], 10, 11)
    loopctl("L_p1", "L_p1d")
    e("v_add_f32 v10, v%d, v%d" % (QG, QG + 4))
    e("v_add_f32 v11, v%d, v%d" % (QG + 2, QG + 6))
    e("v_add_f32 v12, v%d, v%d" % (QG + 8, QG + 12))
    e("v_add_f32 v13, v%d, v%d" % (QG + 10, QG + 14))
    e("v_add_f32 v10, v10, v12")
    e("v_add_f32 v11, v11, v13")
    e("v_cvt_pk_bf16_f32 v10, v10, v11")
    e("v_lshlrev_b32 v11, 2, v0")
    e("v_add_u32 v11, %d, v11" % QL)
    e("ds_write_b32 v11, v10")
    e("v_lshlrev_b32 v12, 8, v%d" % vB4)
    e("v_lshl_add_u32 v12, v%d, 4, v12" % vG)
    e("v_add_u32 v12, %d, v12" % QL)
    e("s_waitcnt lgkmcnt(0)")
    e("s_barrier")
    stamp("s%d" % sCNT)
    for kk in range(4):
        e("ds_read_b128 %s, v12 offset:%d" % (vr(QF + 4 * kk, 4), 64 * kk))
    e("s_waitcnt lgkmcnt(0)")
    S = T0
    for t in range(2):
        for kk in range(4):
            mfma(S + 4 * t, KF + 16 * t + 4 * kk, QF + 4 * kk, kk == 0)
    nop(8)
    for k in range(0, 8, 2):
        e("v_cvt_pk_bf16_f32 v14, v%d, v%d" % (S + k, S + k + 1))
        e("v_and_b32 v15, 0xffff0000, v14")
        e("v_lshlrev_b32 v14, 16, v14")
        e("v_mul_f32 v14, 0x3db504f3, v14")
        e("v_mul_f32 v15, 0x3db504f3, v15")
        e("v_cvt_pk_bf16_f32 v14, v14, v15")
        e("v_and_b32 v15, 0xffff0000, v14")
        e("v_lshlrev_b32 v14, 16, v14")
        e("v_mul_f32 v%d, 0x3fb8aa3b, v14" % (S + k))
        e("v_mul_f32 v%d, 0x3fb8aa3b, v15" % (S + k + 1))
    e("v_max3_f32 v12, v%d, v%d, v%d" % (S, S + 1, S + 2))
    e("v_max3_f32 v12, v12, v%d, v%d" % (S + 3, S + 4))
    e("v_max3_f32 v12, v12, v%d, v%d" % (S + 5, S + 6))
    e("v_max_f32 v12, v12, v%d" % (S + 7))
    allreduce_rows("v_max_f32", [12], 14)
    for k in range(8):
        e("v_sub_f32 v%d, v%d, v12" % (S + k, S + k))
    for k in range(8):
        e("v_exp_f32 v%d, v%d" % (S + k, S + k))
    P = T0 + 8
    nop(1)
    for k in range(4):
        e("v_cvt_pk_bf16_f32 v%d, v%d, v%d" % (P + k, S + 2 * k, S + 2 * k + 1))
    e("v_add_f32 v13, v%d, v%d" % (S, S + 1))
    nop(1)
    OACC = G0
    for u in range(8):
        e("v_mfma_f32_16x16x32_bf16 %s, %s, %s, 0" % (vr(OACC + 4 * u, 4), vr(VF + 4 * u, 4), vr(P, 4)))
    for k in range(2, 8):
        e("v_add_f32 v13, v13, v%d" % (S + k))
    allreduce_rows("v_add_f32", [13], 14)
    e("s_lshl_b32 s13, s%d, 11" % sW)
    e("s_add_u32 s13, s13, %d" % OBUF)
    e("v_lshlrev_b32 v5, 9, v%d" % vB4)
    e("v_lshl_add_u32 v5, v%d, 4, v5" % vG)
    e("v_add_u32 v5, s13, v5")
    e("s_lshl_b32 s13, s%d, 5" % sW)
    e("s_add_u32 s13, s13, %d" % OST)
    e("v_lshlrev_b32 v6, 3, v%d" % vB4)
    e("v_add_u32 v6, s13, v6")
    e("ds_write_b64 v6, v[12:13]")
    for u in range(8):
        e("ds_write_b128 v5, %s offset:%d" % (vr(OACC + 4 * u, 4), 64 * u))
    e("s_lshl_b32 s13, s%d, 9" % sW)
    e("s_add_u32 s13, s13, %d" % OBUF)
    e("v_lshlrev_b32 v5, 3, v%d" % vLANE)
    e("v_add_u32 v5, s13, v5")
    e("s_lshl_b32 s13, s%d, 3" % sW)
    e("s_add_u32 s13, s13, %d" % OST)
    e("v_mov_b32 v6, s13")
    e("s_waitcnt lgkmcnt(0)")
    e("s_barrier")
    for w in range(4):
        e("ds_read_b64 %s, v6 offset:%d" % (vr(T0 + 8 + 2 * w, 2), 32 * w))
    for w in range(4):
        e("ds_read_b64 %s, v5 offset:%d" % (vr(T0 + 2 * w, 2), 2048 * w))
    R = T0 + 16
    e("v_mov_b32 v%d, s%d" % (R + 1, sT))
    e("v_mov_b32 v%d, s%d" % (R + 3, sT))
    e("v_mov_b32 v%d, s%d" % (R + 5, sT))
    e("v_mov_b32 v%d, s%d" % (R + 7, sT))
    e("s_waitcnt lgkmcnt(4)")
    M = T0 + 8
    e("v_max3_f32 v%d, v%d, v%d, v%d" % (R + 4, M, M + 2, M + 4))
    e("v_max_f32 v%d, v%d, v%d" % (R + 4, R + 4, M + 6))
    for w in range(4):
        e("v_sub_f32 v%d, v%d, v%d" % (M + 2 * w, M + 2 * w, R + 4))
    for w in range(4):
        e("v_exp_f32 v%d, v%d" % (M + 2 * w, M + 2 * w))
    e("s_waitcnt lgkmcnt(0)")
    e("v_mul_f32 v%d, v%d, v%d" % (R, M, T0))
    e("v_mul_f32 v%d, v%d, v%d" % (R + 2, M, T0 + 1))
    e("v_mul_f32 v%d, v%d, v%d" % (R + 6, M, M + 1))
    for w in range(1, 4):
        e("v_fmac_f32 v%d, v%d, v%d" % (R, M + 2 * w, T0 + 2 * w))
        e("v_fmac_f32 v%d, v%d, v%d" % (R + 2, M + 2 * w, T0 + 2 * w + 1))
        e("v_fmac_f32 v%d, v%d, v%d" % (R + 6, M + 2 * w, M + 2 * w + 1))
    e("buffer_store_dwordx4 %s, v%d, %s, s32 offen sc1" % (vr(R, 4), vL16, sr(SWS, 4)))
    e("buffer_store_dwordx4 %s, v%d, %s, s33 offen sc1" % (vr(R + 4, 4), vZ, sr(SWS, 4)))
    stamp()
    if int(os.environ.get("DELAY2", "0")):
        for _ in range(12): e("s_sleep 32")
        stamp()
    e("v_cmp_lt_u32 s[40:41], 27, v%d" % vLANE)
    OG, ST, HG = G0, G0 + 16, G0 + 48
    e("s_mov_b32 s%d, 0" % sCNT)
    e("v_lshlrev_b32 v5, 1, v%d" % vLANE)
    e("L_ph:")
    for m in range(8):
        e("s_add_u32 s18, s36, %d" % (65536 * m))
        e("buffer_load_dwordx2 %s, v%d, %s, s18 offen sc1" % (vr(HG + 2 * m, 2), vL8, sr(SWS, 4)))
    e("v_mov_b32 v9, s%d" % sT)
    e("s_waitcnt vmcnt(0)")
    for m in range(8):
        e("v_cndmask_b32 v%d, v%d, v9, s[40:41]" % (HG + 2 * m + 1, HG + 2 * m + 1))
    tagtest([HG + 2 * k + 1 for k in range(8)], 9, 10)
    loopctl("L_ph", "L_phd")
    def o_issue():
        for sp in range(8):
            e("s_add_u32 s18, s34, %d" % (4096 * sp))
            e("buffer_load_dwordx2 %s, v%d, %s, s18 offen sc1" % (vr(OG + 2 * sp, 2), vL8, sr(SWS, 4)))
        e("buffer_load_dwordx4 %s, v11, %s, s35 offen sc1" % (vr(ST, 4), sr(SWS, 4)))
    e("v_and_b32 v11, 7, v%d" % vLANE)
    e("v_lshlrev_b32 v11, 4, v11")
    o_issue()
    e("v_add_f32 v8, v%d, v%d" % (HG, HG + 2))
    for m in range(2, 8):
        e("v_add_f32 v8, v8, v%d" % (HG + 2 * m))
    rbf(8, 8, 9)
    e("v_lshlrev_b32 v9, 16, v%d" % vB1)
    e("v_add_f32 v8, v8, v9")
    rbf(8, 8, 9)
    e("v_mul_f32 v9, v8, v8")
    e("v_mul_f32 v9, 0x3d372713, v9")
    e("v_fma_f32 v9, v9, v8, v8")
    e("v_mul_f32 v9, 0x40135761, v9")
    e("v_exp_f32 v9, v9")
    nop(1)
    e("v_add_f32 v9, 1.0, v9")
    e("v_rcp_f32 v9, v9")
    nop(1)
    e("v_fma_f32 v8, -v8, v9, v8")
    e("v_cvt_pk_bf16_f32 v8, v8, v8")
    e("v_cndmask_b32 v8, v8, 0, s[40:41]")
    e("s_lshl_b32 s13, s%d, 6" % sW)
    e("s_add_u32 s13, s13, %d" % HAL)
    e("v_add_u32 v6, s13, v5")
    e("s_mov_b64 exec, 0xffffffff")
    e("ds_write_b16 v6, v8")
    e("s_mov_b64 exec, -1")
    e("v_mov_b32 v13, 0")
    for k in range(16):
        e("v_lshlrev_b32 v14, 16, v%d" % (GW + k))
        e("v_and_b32 v15, 0xffff0000, v%d" % (GW + k))
        e("v_lshlrev_b32 v6, 16, v%d" % (XA + k))
        e("v_and_b32 v7, 0xffff0000, v%d" % (XA + k))
        e("v_mul_f32 v14, v14, v6")
        e("v_mul_f32 v15, v15, v7")
        e("v_cvt_pk_bf16_f32 v14, v14, v15")
        e("v_and_b32 v15, 0xffff0000, v14")
        e("v_lshlrev_b32 v14, 16, v14")
        e("v_add_f32 v13, v13, v14")
        e("v_add_f32 v13, v13, v15")
    allreduce_ror("v_add_f32", [13])
    allreduce_rows("v_add_f32", [13], 14)
    rbf(13, 13, 14)
    e("v_mul_f32 v13, 0xbfb8aa3b, v13")
    e("v_exp_f32 v13, v13")
    nop(1)
    e("v_add_f32 v13, 1.0, v13")
    e("v_rcp_f32 v13, v13")
    nop(1)
    rbf(vGATE, 13, 14)
    e("s_mov_b32 s%d, 0" % sCNT)
    otags = [OG + 2 * sp + 1 for sp in range(8)] + [ST + 1, ST + 3]
    e("s_waitcnt vmcnt(0)")
    tagtest(otags, 9, 10)
    e("s_cbranch_vccz L_p2d")
    e("L_p2:")
    o_issue()
    e("s_waitcnt vmcnt(0)")
    tagtest(otags, 9, 10)
    loopctl("L_p2", "L_p2d")
    stamp("s%d" % sCNT)
    e("v_mov_b32 v12, v%d" % ST)
    for m in ("quad_perm:[1,0,3,2]", "quad_perm:[2,3,0,1]", "row_half_mirror"):
        nop(2)
        e("v_max_f32_dpp v12, v12, v12 %s row_mask:0xf bank_mask:0xf" % m)
    e("v_sub_f32 v12, v%d, v12" % ST)
    e("v_exp_f32 v12, v12")
    nop(1)
    e("v_mul_f32 v13, v12, v%d" % (ST + 2))
    for k in range(8):
        e("v_readlane_b32 s%d, v12, %d" % (92 + k if not DBG else 60 + k, k))
    for m in ("quad_perm:[1,0,3,2]", "quad_perm:[2,3,0,1]", "row_half_mirror"):
        nop(2)
        e("v_add_f32_dpp v13, v13, v13 %s row_mask:0xf bank_mask:0xf" % m)
    wb = 92 if not DBG else 60
    e("v_mul_f32 v14, s%d, v%d" % (wb, OG))
    for sp in range(1, 8):
        e("v_fmac_f32 v14, s%d, v%d" % (wb + sp, OG + 2 * sp))
    e("v_rcp_f32 v15, v13")
    nop(1)
    e("v_mul_f32 v12, v14, v15")
    e("v_fma_f32 v14, -v12, v13, v14")
    e("v_fma_f32 v12, v14, v15, v12")
    e("v_cvt_pk_bf16_f32 v12, v12, v12")
    e("s_lshl_b32 s13, s%d, 7" % sW)
    e("s_add_u32 s13, s13, %d" % OA)
    e("v_add_u32 v6, s13, v5")
    e("ds_write_b16 v6, v12")
    e("v_lshlrev_b32 v5, 7, v%d" % vB4)
    e("v_lshl_add_u32 v5, v%d, 4, v5" % vG)
    e("v_add_u32 v5, %d, v5" % OA)
    e("v_lshlrev_b32 v6, 6, v%d" % vB4)
    e("v_lshl_add_u32 v6, v%d, 4, v6" % vG)
    e("v_add_u32 v6, %d, v6" % HAL)
    e("v_lshl_add_u32 v8, v%d, 3, v%d" % (vG, vR))
    e("v_lshlrev_b32 v8, 8, v8")
    e("v_lshl_add_u32 v8, v%d, 3, v8" % vB4)
    e("v_and_b32 v9, 1, v%d" % vG)
    e("v_lshl_or_b32 v9, v9, 2, v%d" % vR)
    e("s_lshl_b32 s13, s%d, 1" % sW)
    e("v_xor_b32 v9, s13, v9")
    e("v_lshl_add_u32 v8, v9, 5, v8")
    e("v_add_u32 v8, %d, v8" % WO)
    e("v_xor_b32 v9, 32, v8")
    e("s_waitcnt lgkmcnt(0)")
    e("s_barrier")
    HA = T0; AO = T0 + 4
    e("ds_read_b128 %s, v5" % vr(AO, 4))
    e("ds_read_b128 %s, v5 offset:64" % vr(AO + 4, 4))
    e("ds_read_b128 %s, v6" % vr(HA, 4))
    BO = G0; BM = G0 + 16
    for ct in range(2):
        for kk in range(2):
            e("ds_read_b64_tr_b16 %s, v%d offset:%d" % (vr(BO + 8 * ct + 4 * kk, 2), 8 + ct, kk * 8192))
            e("ds_read_b64_tr_b16 %s, v%d offset:%d" % (vr(BO + 8 * ct + 4 * kk + 2, 2), 8 + ct, kk * 8192 + 1024))
        e("ds_read_b64_tr_b16 %s, v%d offset:%d" % (vr(BM + 4 * ct, 2), 8 + ct, W2 - WO))
        e("ds_read_b64_tr_b16 %s, v%d offset:%d" % (vr(BM + 4 * ct + 2, 2), 8 + ct, W2 - WO + 1024))
    RR = G0 + 40
    for k in (1, 3, 5, 7):
        e("v_mov_b32 v%d, s%d" % (RR + k, sT))
    e("s_waitcnt lgkmcnt(0)")
    DA = G0 + 24; DM = G0 + 32
    for ct in range(2):
        for kk in range(2):
            mfma(DA + 4 * ct, AO + 4 * kk, BO + 8 * ct + 4 * kk, kk == 0)
        mfma(DM + 4 * ct, HA, BM + 4 * ct, True)
    nop(5)
    for ct in range(2):
        select_g(RR + 4 * ct, DA + 4 * ct)
        if ct == 1: nop(1)
        select_g(RR + 4 * ct + 2, DM + 4 * ct)
        e("buffer_store_dwordx4 %s, v%d, %s, s%d offen sc1" % (vr(RR + 4 * ct, 4), vPP, sr(SWS, 4), 37 + ct))
    stamp()
    if int(os.environ.get("DELAY2", "0")):
        for _ in range(12): e("s_sleep 32")
        stamp()
    e("s_lshl_b32 s15, s%d, 6" % sW)
    e("s_add_u32 s15, s15, %d" % FR)
    e("v_lshlrev_b32 v6, 4, v%d" % vB4)
    e("v_add_u32 v6, s15, v6")
    F = G0
    e("s_mov_b32 s%d, 0" % sCNT)
    e("L_p3:")
    e("buffer_load_dwordx4 %s, v%d, %s, s39 offen sc1" % (vr(F, 4), vL32, sr(SWS, 4)))
    e("buffer_load_dwordx4 %s, v%d, %s, s39 offen offset:16 sc1" % (vr(F + 4, 4), vL32, sr(SWS, 4)))
    e("s_waitcnt vmcnt(0)")
    tagtest([F + 1, F + 3, F + 5, F + 7], 9, 10)
    loopctl("L_p3", "L_p3d")
    stamp("s%d" % sCNT)
    e("v_mov_b32 v%d, v%d" % (F + 1, F + 2))
    e("v_mov_b32 v%d, v%d" % (F + 2, F + 4))
    e("v_mov_b32 v%d, v%d" % (F + 3, F + 6))
    vs = [F, F + 1, F + 2, F + 3]
    allreduce_ror("v_add_f32", vs)
    allreduce_rows("v_add_f32", vs, F + 8)
    e("ds_write_b128 v6, %s" % vr(F, 4))
    e("s_waitcnt lgkmcnt(0)")
    e("s_barrier")
    e("s_cmp_lg_u32 s%d, 0" % sW)
    e("s_cbranch_scc1 L_end")
    e("v_and_b32 v5, 7, v%d" % vLANE)
    e("v_lshlrev_b32 v5, 3, v5")
    e("v_add_u32 v5, %d, v5" % FR)
    for w in range(4):
        e("ds_read_b64 %s, v5 offset:%d" % (vr(F + 2 * w, 2), 64 * w))
    e("s_lshl_b32 s13, s%d, 8" % sCB)
    e("s_lshl_b32 s14, s%d, 2" % sRB)
    e("s_add_u32 s13, s13, s14")
    e("v_and_b32 v6, 1, v%d" % vR)
    e("v_lshlrev_b32 v6, 1, v6")
    e("v_lshl_add_u32 v6, v%d, 10, v6" % vB4)
    e("v_sub_f32 v12, 1.0, v%d" % vGATE)
    rbf(12, 12, 15)
    e("v_lshlrev_b32 v11, 16, v%d" % vB2)
    e("s_waitcnt lgkmcnt(0)")
    e("v_add_f32 v13, v%d, v%d" % (F, F + 2))
    e("v_add_f32 v14, v%d, v%d" % (F + 1, F + 3))
    e("v_add_f32 v13, v13, v%d" % (F + 4))
    e("v_add_f32 v14, v14, v%d" % (F + 5))
    e("v_add_f32 v13, v13, v%d" % (F + 6))
    e("v_add_f32 v14, v14, v%d" % (F + 7))
    rbf(13, 13, 15)
    rbf(14, 14, 15)
    e("v_add_f32 v14, v14, v11")
    rbf(14, 14, 15)
    e("v_mul_f32 v13, v%d, v13" % vGATE)
    rbf(13, 13, 15)
    e("v_mul_f32 v14, v12, v14")
    rbf(14, 14, 15)
    e("v_add_f32 v13, v13, v14")
    e("v_cvt_pk_bf16_f32 v13, v13, v13")
    e("s_mov_b64 exec, 0xff")
    e("buffer_store_short v13, v6, %s, s13 offen" % sr(SOUT, 4))
    e("s_mov_b64 exec, -1")
    stamp()
    e("s_cmp_lg_u32 s2, 0")
    e("s_cbranch_scc1 L_end")
    e("v_mov_b32 v5, 0")
    e("v_mov_b32 v6, s%d" % sT)
    e("buffer_store_dword v6, v5, %s, 0 offen" % sr(SWS, 4))
    if DBG:
        e("s_memrealtime s[16:17]")
        e("s_memtime s[18:19]")
        e("s_waitcnt lgkmcnt(0)")
        e("s_sub_u32 s16, s16, s92")
        e("s_sub_u32 s18, s18, s94")
        e("v_mov_b32 v6, s16")
        e("v_mov_b32 v7, s18")
        e("buffer_store_dwordx2 v[6:7], v5, s[96:99], 0 offen")
    e("L_end:")
    e("s_endpgm")

body()
text = HEADER + "; @launch grid=(256,1,1) block=(256,1,1) lds=%d\n" % LDS_BYTES
text += """.amdgcn_target "amdgcn-amd-amdhsa--gfx950"
.text
.globl {n}_kernel
.p2align 8
.type {n}_kernel,@function
{n}_kernel:
""".format(n=NAME)
text += "\n".join(out) + "\n"
text += """.section .rodata,"a"
.p2align 6
.amdhsa_kernel {n}_kernel
  .amdhsa_next_free_vgpr 256
  .amdhsa_next_free_sgpr 102
  .amdhsa_accum_offset 256
  .amdhsa_group_segment_fixed_size 0
  .amdhsa_kernarg_size 112
  .amdhsa_user_sgpr_count 2
  .amdhsa_user_sgpr_kernarg_segment_ptr 1
  .amdhsa_system_sgpr_workgroup_id_x 1
  .amdhsa_float_denorm_mode_32 3
.end_amdhsa_kernel
""".format(n=NAME)
path = sys.argv[1] if len(sys.argv) > 1 else "cdna_kernels/%s.s" % NAME
open(path, "w").write(text)
print("wrote", path, len(out), "lines")
```

```python
import sys, os

NAME = "gated_mix__sliding_block_cached__mixer_channel_mlp__decode"
HEADER = open("cdna_kernels/%s.s.ref" % NAME).read().split("; Override launch geometry")[0]

LDS_BYTES = 132 * 1024
XL = 0x1F400; GL = 0x20400
WQ = 0x0000; W1 = 0x4000; KK = 0x6000; VV = 0xE000; WO = 0x16000; W2 = 0x1A000
SC = 0x1C000
QL = SC; OST = SC + 0x400; OA = SC + 0x500; HAL = SC + 0x700; FR = SC + 0x800; OBUF = SC + 0x1000
QB = 0x10000; HB = 0x90000; SB = 0x110000; OB = 0x120000; PB = 0x220000; WS_END = 0x420000
LIMIT = 20000
STAMP = int(os.environ.get("STAMP", "0"))
DBG = int(os.environ.get("DBG", "0"))
FINE = int(os.environ.get("FINE", "0"))
if STAMP: WS_END = 0x900000

out = []
def e(s=""):
    out.append("    " + s if s and not s.endswith(":") else s)
def nop(n):
    while n > 0:
        k = min(n, 16)
        e("s_nop %d" % (k - 1)); n -= k
def vr(a, n): return "v[%d:%d]" % (a, a + n - 1)
def sr(a, n): return "s[%d:%d]" % (a, a + n - 1)

sKVH, sJ, sB, sS, sW, sRB, sCB, sT, sCNT = 4, 5, 6, 7, 8, 9, 10, 11, 12
SX, SK, SV, SWQ, SWO, SW1, SB1, SW2, SB2, SGW, SOUT, SWS = 44, 48, 52, 56, 60, 64, 68, 72, 76, 80, 84, 88
vLANE, vG, vN, vB4 = 1, 2, 3, 4
vGATE, vB1, vB2, vR = 16, 17, 18, 19
vTA = 243
vQP, vHP, vT16, vL16, vL8, vL32, vZ, vPP = 244, 245, 246, 247, 248, 249, 250, 251
PRETOUCH = int(os.environ.get("PRETOUCH", "0"))
NPT = 28 if PRETOUCH else 0
XF, XM, XA, GW = 20, 36, 44, 60
KF, VF = 76, 108
QF = 140
G0 = 156
T0 = 220

stamp_n = [0]
def stamp(extra=None):
    if not STAMP: return
    k = stamp_n[0]; stamp_n[0] += 1
    e("s_memrealtime s[96:97]")
    e("s_lshl_b32 s98, s2, 2")
    e("s_add_u32 s98, s98, s%d" % sW)
    e("s_lshl_b32 s98, s98, 7")
    e("s_add_u32 s98, s98, 0x800000")
    e("s_waitcnt lgkmcnt(0)")
    e("v_mov_b32 v252, s96")
    e("v_mov_b32 v253, %s" % (extra if extra else "0"))
    e("v_mov_b32 v254, 0")
    e("buffer_store_dwordx2 v[252:253], v254, s[88:91], s98 offen offset:%d" % (8 * k))

def rbf(dst, src, tmp):
    e("v_cvt_pk_bf16_f32 v%d, v%d, v%d" % (tmp, src, src))
    e("v_lshlrev_b32 v%d, 16, v%d" % (dst, tmp))

def allreduce_rows(op, vs, t):
    for sw in ("v_permlane16_swap_b32", "v_permlane32_swap_b32"):
        for i, v in enumerate(vs):
            e("v_mov_b32 v%d, v%d" % (t + i, v))
        nop(max(0, 3 - len(vs)))
        for i, v in enumerate(vs):
            e("%s v%d, v%d" % (sw, v, t + i))
        for i, v in enumerate(vs):
            e("%s v%d, v%d, v%d" % (op, v, v, t + i))

def allreduce_ror(op, vs):
    for r in (4, 8):
        nop(2 if r == 4 else max(0, 3 - len(vs)))
        for v in vs:
            e("%s_dpp v%d, v%d, v%d row_ror:%d row_mask:0xf bank_mask:0xf" % (op, v, v, v, r))

def tagtest(tags, vmin, vmax):
    t = list(tags)
    for op, acc in (("v_min3_u32", vmin), ("v_max3_u32", vmax)):
        r = list(t)
        e("%s v%d, v%d, v%d, v%d" % (op, acc, r[0], r[1], r[2])); r = r[3:]
        while len(r) >= 2:
            e("%s v%d, v%d, v%d, v%d" % (op, acc, acc, r[0], r[1])); r = r[2:]
        if r:
            e("%s v%d, v%d, v%d" % (op.replace("3_", "_"), acc, acc, r[0]))
    e("v_xor_b32 v%d, s%d, v%d" % (vmin, sT, vmin))
    e("v_xor_b32 v%d, s%d, v%d" % (vmax, sT, vmax))
    e("v_or_b32 v%d, v%d, v%d" % (vmin, vmin, vmax))
    e("v_cmp_ne_u32 vcc, 0, v%d" % vmin)

def loopctl(label, done):
    e("s_add_u32 s%d, s%d, 1" % (sCNT, sCNT))
    e("s_cmp_lt_u32 s%d, %d" % (sCNT, LIMIT))
    e("s_cbranch_scc0 %s" % done)
    e("s_cbranch_vccnz %s" % label)
    e("%s:" % done)

def dma(srd, vaddr, soff, ldsaddr_s, flags=" nt"):
    e("s_mov_b32 m0, s%d" % ldsaddr_s)
    e("s_nop 0")
    e("buffer_load_dwordx4 v%d, %s, s%d offen%s lds" % (vaddr, sr(srd, 4), soff, flags))

def mfma(d, a, b, first):
    e("v_mfma_f32_16x16x32_bf16 %s, %s, %s, %s" % (vr(d, 4), vr(a, 4), vr(b, 4), "0" if first else vr(d, 4)))

def select_g(dst, src):
    e("v_cndmask_b32 v%d, v%d, v%d, s[20:21]" % (dst, src, src + 1))
    e("v_cndmask_b32 v%d, v%d, v%d, s[22:23]" % (dst, dst, src + 2))
    e("v_cndmask_b32 v%d, v%d, v%d, s[24:25]" % (dst, dst, src + 3))

KVMODE = os.environ.get("KVMODE", "0")
def kv_base():
    e("s_lshl_b32 s16, s%d, 3" % sB)
    e("s_add_u32 s16, s16, s%d" % sKVH)
    e("s_lshl_b32 s16, s16, 12")
    e("s_lshl_b32 s17, s%d, 7" % sS)
    e("s_add_u32 s16, s16, s17")
    e("s_lshl_b32 s17, s%d, 5" % sW)
    e("s_add_u32 s16, s16, s17")
    e("s_add_u32 s16, s16, 3072")
    e("s_lshl_b32 s16, s16, 8")
    e("s_mov_b32 s17, s16")
def k_dma():
    kv_base()
    e("v_xor_b32 v5, v%d, v%d" % (vN, vG))
    e("v_lshlrev_b32 v5, 4, v5")
    e("v_lshl_add_u32 v5, v%d, 8, v5" % vG)
    e("v_xor_b32 v6, 64, v5")
    e("v_xor_b32 v7, 0x80, v5")
    e("v_xor_b32 v8, 0xc0, v5")
    e("s_lshl_b32 s18, s%d, 13" % sW)
    e("s_add_u32 s18, s18, %d" % KK)
    for t in range(8):
        dma(SK, 5 + (t & 3), 16, 18)
        if t < 7:
            e("s_add_u32 s16, s16, 1024")
            e("s_add_u32 s18, s18, 1024")
def v_dma():
    kv_base()
    e("v_lshlrev_b32 v7, 1, v%d" % vG)
    e("v_xor_b32 v5, v%d, v7" % vN)
    e("v_xor_b32 v6, 8, v5")
    e("v_lshlrev_b32 v5, 4, v5")
    e("v_lshlrev_b32 v6, 4, v6")
    e("v_lshl_add_u32 v5, v%d, 8, v5" % vG)
    e("v_lshl_add_u32 v6, v%d, 8, v6" % vG)
    e("s_lshl_b32 s18, s%d, 13" % sW)
    e("s_add_u32 s18, s18, %d" % VV)
    for t in range(8):
        dma(SV, 5 + (t & 1), 17, 18)
        if t < 7:
            e("s_add_u32 s17, s17, 1024")
            e("s_add_u32 s18, s18, 1024")
def KV_EARLY():
    if KVMODE in ("0", "B"): k_dma()
    if KVMODE == "0": v_dma()
def KV_LATE():
    if KVMODE == "A": k_dma()
    if KVMODE in ("A", "B"): v_dma()
NEARLY = {"0": 16, "B": 8, "A": 0}[KVMODE]

def body():
    e("s_cmp_ge_u32 s2, 256")
    e("s_cbranch_scc1 L_end")
    e("s_load_dwordx16 s[16:31], s[0:1], 0")
    e("s_load_dwordx8 s[32:39], s[0:1], 64")
    e("s_load_dwordx4 s[40:43], s[0:1], 96")
    e("v_and_b32 v%d, 63, v0" % vLANE)
    e("v_lshrrev_b32 v5, 6, v0")
    e("v_lshrrev_b32 v%d, 4, v%d" % (vG, vLANE))
    e("v_and_b32 v%d, 15, v0" % vN)
    e("v_and_b32 v%d, 3, v0" % vB4)
    e("v_readfirstlane_b32 s%d, v5" % sW)
    e("v_bfe_u32 v%d, v0, 2, 2" % vR)
    e("s_and_b32 s%d, s2, 7" % sKVH)
    e("s_lshr_b32 s%d, s2, 3" % sJ)
    e("s_lshr_b32 s%d, s%d, 3" % (sB, sJ))
    e("s_and_b32 s%d, s%d, 7" % (sS, sJ))
    e("s_lshl_b32 s%d, s%d, 3" % (sRB, sKVH))
    e("s_add_u32 s%d, s%d, s%d" % (sRB, sRB, sS))
    e("s_mov_b32 s%d, s%d" % (sCB, sB))
    e("s_waitcnt lgkmcnt(0)")
    e("s_load_dword s%d, s[42:43], 0" % sT)
    srds = [(SX, 16, 4096), (SK, 18, 33554432), (SV, 20, 33554432), (SWQ, 22, 4194304), (SWO, 24, 4194304),
            (SW1, 28, 1835008), (SB1, 30, 3584), (SW2, 32, 1835008), (SB2, 34, 1024), (SGW, 36, 1024),
            (SOUT, 38, 4096), (SWS, 42, WS_END)]
    for d, p, n in srds:
        e("s_mov_b32 s%d, s%d" % (d, p))
        e("s_and_b32 s%d, s%d, 0xffff" % (d + 1, p + 1))
        e("s_mov_b32 s%d, %d" % (d + 2, n))
        e("s_mov_b32 s%d, 0x00020000" % (d + 3))
    stamp()
    if DBG:
        e("s_memrealtime s[92:93]")
        e("s_memtime s[94:95]")
        e("s_mov_b32 s96, s40"); e("s_and_b32 s97, s41, 0xffff"); e("s_mov_b32 s98, 256"); e("s_mov_b32 s99, 0x00020000")
    e("v_lshlrev_b32 v10, 4, v%d" % vLANE)
    e("s_lshl_b32 s13, s%d, 10" % sW)
    e("s_add_u32 s18, s13, %d" % XL)
    dma(SX, 10, 13, 18, flags="")
    e("s_mov_b32 s13, 0")
    e("s_mov_b32 s18, %d" % GL)
    dma(SGW, 10, 13, 18, flags="")
    e("s_mul_i32 s13, s%d, 56" % sRB)
    e("v_lshlrev_b32 v11, 1, v%d" % vLANE)
    e("buffer_load_ushort v%d, v11, %s, s13 offen" % (vB1, sr(SB1, 4)))
    e("s_lshl_b32 s13, s%d, 8" % sCB)
    e("s_lshl_b32 s14, s%d, 2" % sRB)
    e("s_add_u32 s13, s13, s14")
    e("v_and_b32 v11, 1, v%d" % vR)
    e("v_lshlrev_b32 v11, 1, v11")
    e("buffer_load_ushort v%d, v11, %s, s13 offen" % (vB2, sr(SB2, 4)))
    e("v_lshrrev_b32 v5, 3, v%d" % vLANE)
    e("v_and_b32 v6, 7, v%d" % vLANE)
    e("v_lshrrev_b32 v7, 4, v%d" % vLANE)
    e("v_and_b32 v7, 1, v7")
    e("v_lshlrev_b32 v7, 1, v7")
    e("v_xor_b32 v6, v6, v7")
    e("v_xor_b32 v7, 4, v6")
    e("v_lshlrev_b32 v8, 13, v5")
    e("v_lshl_add_u32 v9, v7, 4, v8")
    e("v_lshl_add_u32 v8, v6, 4, v8")
    e("s_lshl_b32 s16, s%d, 20" % sB)
    e("s_lshl_b32 s17, s%d, 18" % sW)
    e("s_add_u32 s16, s16, s17")
    e("s_lshl_b32 s17, s%d, 7" % sRB)
    e("s_add_u32 s16, s16, s17")
    e("s_lshl_b32 s18, s%d, 12" % sW)
    for t in range(4):
        dma(SWQ, 8 + (t & 1), 16, 18)
        if t < 3:
            e("s_add_u32 s16, s16, %d" % (8 * 8192))
            e("s_add_u32 s18, s18, 1024")
    e("s_min_u32 s14, s%d, 27" % sJ)
    e("s_mov_b32 s15, 3584")
    e("v_mul_lo_u32 v8, v5, s15")
    e("v_lshl_add_u32 v9, v7, 4, v8")
    e("v_lshl_add_u32 v8, v6, 4, v8")
    e("s_mul_i32 s16, s%d, %d" % (sKVH, 64 * 3584))
    e("s_mul_i32 s17, s%d, %d" % (sW, 16 * 3584))
    e("s_add_u32 s16, s16, s17")
    e("s_lshl_b32 s17, s14, 7")
    e("s_add_u32 s16, s16, s17")
    e("s_lshl_b32 s18, s%d, 11" % sW)
    e("s_add_u32 s18, s18, %d" % W1)
    for t in range(2):
        dma(SW1, 8 + t, 16, 18)
        if t == 0:
            e("s_add_u32 s16, s16, %d" % (8 * 3584))
            e("s_add_u32 s18, s18, 1024")
    KV_EARLY()
    e("s_lshl_b32 s26, s%d, 15" % sB)
    e("s_lshl_b32 s14, s%d, 12" % sKVH)
    e("s_add_u32 s26, s26, s14")
    e("s_add_u32 s26, s26, %d" % QB)
    e("s_add_u32 s27, s26, 0x20000")
    e("s_add_u32 s28, s26, 0x40000")
    e("s_add_u32 s29, s26, 0x60000")
    e("s_lshl_b32 s30, s%d, 17" % sB)
    e("s_lshl_b32 s14, s%d, 9" % sRB)
    e("s_add_u32 s30, s30, s14")
    e("s_lshl_b32 s14, s%d, 7" % sW)
    e("s_add_u32 s30, s30, s14")
    e("s_add_u32 s30, s30, %d" % QB)
    e("s_lshl_b32 s31, s%d, 16" % sKVH)
    e("s_lshl_b32 s15, s%d, 9" % sJ)
    e("s_add_u32 s31, s31, s15")
    e("s_add_u32 s31, s31, s14")
    e("s_add_u32 s31, s31, %d" % HB)
    e("s_lshl_b32 s13, s%d, 3" % sB)
    e("s_add_u32 s13, s13, s%d" % sKVH)
    e("s_lshl_b32 s32, s13, 3")
    e("s_add_u32 s32, s32, s%d" % sS)
    e("s_lshl_b32 s32, s32, 12")
    e("s_lshl_b32 s16, s%d, 10" % sW)
    e("s_add_u32 s32, s32, s16")
    e("s_add_u32 s32, s32, %d" % OB)
    e("s_lshl_b32 s33, s13, 2")
    e("s_add_u32 s33, s33, s%d" % sW)
    e("s_lshl_b32 s33, s33, 3")
    e("s_add_u32 s33, s33, s%d" % sS)
    e("s_lshl_b32 s33, s33, 4")
    e("s_add_u32 s33, s33, %d" % SB)
    e("s_lshl_b32 s13, s%d, 3" % sW)
    e("s_add_u32 s13, s13, s%d" % sKVH)
    e("s_lshr_b32 s17, s%d, 1" % sS)
    e("s_lshl_b32 s34, s13, 15")
    e("s_lshl_b32 s16, s17, 10")
    e("s_add_u32 s34, s34, s16")
    e("s_and_b32 s16, s%d, 1" % sS)
    e("s_lshl_b32 s16, s16, 9")
    e("s_add_u32 s34, s34, s16")
    e("s_add_u32 s34, s34, %d" % OB)
    e("s_lshl_b32 s35, s13, 2")
    e("s_add_u32 s35, s35, s17")
    e("s_lshl_b32 s35, s35, 7")
    e("s_add_u32 s35, s35, %d" % SB)
    e("s_mul_i32 s36, s%d, 224" % sRB)
    e("s_lshl_b32 s14, s%d, 14" % sW)
    e("s_add_u32 s36, s36, s14")
    e("s_add_u32 s36, s36, %d" % HB)
    e("s_lshl_b32 s37, s%d, 19" % sCB)
    e("s_lshl_b32 s15, s%d, 17" % sW)
    e("s_add_u32 s39, s37, %d" % PB)
    e("s_add_u32 s37, s37, s15")
    e("s_lshl_b32 s15, s%d, 7" % sRB)
    e("s_add_u32 s37, s37, s15")
    e("s_add_u32 s37, s37, %d" % PB)
    e("s_add_u32 s38, s37, 65536")
    e("s_lshl_b32 s15, s%d, 13" % sRB)
    e("s_add_u32 s39, s39, s15")
    e("s_lshl_b32 s15, s%d, 11" % sW)
    e("s_add_u32 s39, s39, s15")
    e("v_lshlrev_b32 v%d, 15, v%d" % (vQP, vG))
    e("v_lshl_add_u32 v%d, v%d, 3, v%d" % (vQP, vN, vQP))
    e("v_lshlrev_b32 v%d, 14, v%d" % (vHP, vG))
    e("v_lshl_add_u32 v%d, v%d, 3, v%d" % (vHP, vN, vHP))
    e("v_lshlrev_b32 v%d, 4, v0" % vT16)
    e("v_lshlrev_b32 v%d, 4, v%d" % (vL16, vLANE))
    e("v_lshlrev_b32 v%d, 3, v%d" % (vL8, vLANE))
    e("v_lshlrev_b32 v%d, 5, v%d" % (vL32, vLANE))
    e("v_mov_b32 v%d, 0" % vZ)
    e("v_lshrrev_b32 v%d, 1, v%d" % (vPP, vN))
    e("v_lshlrev_b32 v%d, 13, v%d" % (vPP, vPP))
    e("v_and_b32 v6, 1, v%d" % vN)
    e("v_lshl_add_u32 v%d, v6, 6, v%d" % (vPP, vPP))
    e("v_lshl_add_u32 v%d, v%d, 4, v%d" % (vPP, vG, vPP))
    if PRETOUCH:
        D = KF
        def touch(v, so):
            e("buffer_load_dword v%d, v%d, %s, s%d offen sc1" % (D, v, sr(SWS, 4), so))
        for r in range(4): touch(vT16, 26 + r)
        touch(vQP, 30); touch(vHP, 31); touch(vL16, 32); touch(vZ, 33); touch(vZ, 35)
        for k in range(8):
            e("s_add_u32 s18, s34, %d" % (4096 * k)); touch(vL8, 18)
        for k in range(8):
            e("s_add_u32 s18, s36, %d" % (65536 * k)); touch(vL8, 18)
        touch(vPP, 37); touch(vPP, 38); touch(vL32, 39)
    e("v_cmp_eq_u32 s[20:21], 1, v%d" % vG)
    e("v_cmp_eq_u32 s[22:23], 2, v%d" % vG)
    e("v_cmp_eq_u32 s[24:25], 3, v%d" % vG)
    e("s_waitcnt lgkmcnt(0)")
    e("s_add_u32 s%d, s%d, 1" % (sT, sT))
    e("v_lshl_add_u32 v9, v%d, 3, v%d" % (vG, vR))
    e("v_lshlrev_b32 v10, 7, v9")
    e("v_lshl_add_u32 v10, v%d, 3, v10" % vB4)
    e("v_lshrrev_b32 v11, 1, v%d" % vR)
    e("v_and_b32 v12, 1, v%d" % vG)
    e("v_lshl_or_b32 v11, v12, 1, v11")
    e("v_xor_b32 v11, s%d, v11" % sW)
    e("v_lshl_add_u32 v10, v11, 5, v10")
    e("v_mov_b32 v%d, v10" % vTA)
    e("v_lshlrev_b32 v10, 10, v%d" % vB4)
    e("v_lshl_add_u32 v10, v%d, 4, v10" % vG)
    e("s_lshl_b32 s13, s%d, 8" % sB)
    e("s_add_u32 s13, s13, %d" % XL)
    e("v_add_u32 v11, s13, v10")
    e("s_lshl_b32 s13, s%d, 7" % sKVH)
    e("s_add_u32 s13, s13, %d" % XL)
    e("v_add_u32 v10, s13, v10")
    e("v_lshrrev_b32 v12, 2, v%d" % vLANE)
    e("v_lshlrev_b32 v12, 6, v12")
    e("v_lshl_add_u32 v13, v%d, 10, v12" % vB4)
    e("v_add_u32 v13, %d, v13" % XL)
    e("v_add_u32 v12, %d, v12" % GL)
    e("s_waitcnt vmcnt(%d)" % (8 + NEARLY + NPT))
    e("s_barrier")
    for k in range(4):
        e("ds_read_b128 %s, v13 offset:%d" % (vr(XA + 4 * k, 4), 16 * k))
    for k in range(4):
        e("ds_read_b128 %s, v12 offset:%d" % (vr(GW + 4 * k, 4), 16 * k))
    for kk in range(2):
        e("ds_read_b128 %s, v10 offset:%d" % (vr(XM + 4 * kk, 4), 64 * kk))
    for kk in range(4):
        e("ds_read_b128 %s, v11 offset:%d" % (vr(XF + 4 * kk, 4), 64 * kk))
    KV_LATE()
    e("s_waitcnt lgkmcnt(0)")
    e("v_mov_b32 v10, v%d" % vTA)
    e("s_waitcnt vmcnt(%d)" % (16 + NPT))
    e("s_barrier")
    stamp()
    BF = G0
    for kk in range(4):
        e("ds_read_b64_tr_b16 %s, v10 offset:%d" % (vr(BF + 4 * kk, 2), WQ + kk * 4096))
        e("ds_read_b64_tr_b16 %s, v10 offset:%d" % (vr(BF + 4 * kk + 2, 2), WQ + kk * 4096 + 512))
    e("v_mov_b32 v%d, s%d" % (T0 + 5, sT))
    e("s_waitcnt lgkmcnt(0)")
    for kk in range(4):
        mfma(T0, XF + 4 * kk, BF + 4 * kk, kk == 0)
    nop(8)
    select_g(T0 + 4, T0)
    e("buffer_store_dwordx2 %s, v%d, %s, s30 offen sc1" % (vr(T0 + 4, 2), vQP, sr(SWS, 4)))
    stamp()
    U = G0
    for k in range(16):
        e("v_lshlrev_b32 v%d, 16, v%d" % (U + 2 * k, XA + k))
        e("v_and_b32 v%d, 0xffff0000, v%d" % (U + 2 * k + 1, XA + k))
    e("v_pk_add_f32 v[12:13], %s, %s" % (vr(U, 2), vr(U + 2, 2)))
    for k in range(2, 16):
        e("v_pk_add_f32 v[12:13], v[12:13], %s" % vr(U + 2 * k, 2))
    e("v_add_f32 v12, v12, v13")
    allreduce_ror("v_add_f32", [12])
    allreduce_rows("v_add_f32", [12], 14)
    e("v_mul_f32 v12, 0x3b000000, v12")
    e("v_mov_b32 v13, v12")
    e("v_mov_b32 v10, 0")
    e("v_mov_b32 v11, 0")
    for k in range(16):
        e("v_pk_add_f32 v[14:15], %s, v[12:13] neg_lo:[0,1] neg_hi:[0,1]" % vr(U + 2 * k, 2))
        e("v_pk_fma_f32 v[10:11], v[14:15], v[14:15], v[10:11]")
    e("v_add_f32 v11, v10, v11")
    allreduce_ror("v_add_f32", [11])
    allreduce_rows("v_add_f32", [11], 14)
    e("v_mul_f32 v11, 0x3b000000, v11")
    rbf(12, 12, 14)
    rbf(11, 11, 14)
    e("v_add_f32 v11, 0x3727c5ac, v11")
    rbf(11, 11, 14)
    e("v_sqrt_f32 v11, v11")
    nop(1)
    rbf(11, 11, 14)
    e("v_rcp_f32 v9, v11")
    for k in range(8):
        x = XM + k
        e("v_lshlrev_b32 v14, 16, v%d" % x)
        e("v_and_b32 v15, 0xffff0000, v%d" % x)
        e("v_sub_f32 v14, v14, v12")
        e("v_sub_f32 v15, v15, v12")
        e("v_cvt_pk_bf16_f32 v14, v14, v15")
        e("v_and_b32 v15, 0xffff0000, v14")
        e("v_lshlrev_b32 v14, 16, v14")
        e("v_mul_f32 v6, v14, v9")
        e("v_mul_f32 v7, v15, v9")
        e("v_fma_f32 v14, -v6, v11, v14")
        e("v_fma_f32 v15, -v7, v11, v15")
        e("v_fma_f32 v6, v14, v9, v6")
        e("v_fma_f32 v7, v15, v9, v7")
        e("v_cvt_pk_bf16_f32 v%d, v6, v7" % x)
    e("v_mov_b32 v10, v%d" % vTA)
    e("s_cmp_ge_u32 s%d, 28" % sJ)
    e("s_cbranch_scc1 L_hdone")
    for kk in range(2):
        e("ds_read_b64_tr_b16 %s, v10 offset:%d" % (vr(BF + 16 + 4 * kk, 2), W1 + kk * 4096))
        e("ds_read_b64_tr_b16 %s, v10 offset:%d" % (vr(BF + 16 + 4 * kk + 2, 2), W1 + kk * 4096 + 512))
    e("s_waitcnt lgkmcnt(0)")
    for kk in range(2):
        mfma(T0, XM + 4 * kk, BF + 16 + 4 * kk, kk == 0)
    nop(8)
    select_g(T0 + 4, T0)
    e("buffer_store_dwordx2 %s, v%d, %s, s31 offen sc1" % (vr(T0 + 4, 2), vHP, sr(SWS, 4)))
    e("L_hdone:")
    stamp()
    e("v_xor_b32 v6, v%d, v%d" % (vN, vG))
    e("v_lshlrev_b32 v6, 4, v6")
    e("v_lshl_add_u32 v6, v%d, 8, v6" % vN)
    e("s_lshl_b32 s17, s%d, 13" % sW)
    e("s_add_u32 s17, s17, %d" % KK)
    e("v_add_u32 v6, s17, v6")
    e("v_lshrrev_b32 v8, 2, v%d" % vLANE)
    e("v_and_b32 v9, 7, v8")
    e("v_lshlrev_b32 v9, 5, v9")
    e("v_lshl_add_u32 v9, v8, 8, v9")
    e("v_lshl_add_u32 v9, v%d, 3, v9" % vB4)
    e("s_lshl_b32 s17, s%d, 13" % sW)
    e("s_add_u32 s17, s17, %d" % VV)
    e("v_add_u32 v9, s17, v9")
    e("s_mov_b32 s%d, 0" % sCNT)
    QG = G0
    def p1_issue(wait=True):
        for r in range(4):
            e("buffer_load_dwordx4 %s, v%d, %s, s%d offen sc1" % (vr(QG + 4 * r, 4), vT16, sr(SWS, 4), 26 + r))
        if wait: e("s_waitcnt vmcnt(0)")
    p1_issue(False)
    e("v_mov_b32 v%d, v6" % (T0 + 20))
    e("v_mov_b32 v%d, v9" % (T0 + 21))
    e("v_lshlrev_b32 v7, 1, v%d" % vG)
    e("v_xor_b32 v5, v%d, v7" % vN)
    e("v_xor_b32 v6, 8, v5")
    e("s_and_b32 s14, s%d, 1" % sW)
    e("s_lshl_b32 s14, s14, 3")
    e("v_xor_b32 v7, s14, v5")
    e("v_lshlrev_b32 v5, 4, v5")
    e("v_lshlrev_b32 v6, 4, v6")
    e("v_lshlrev_b32 v7, 4, v7")
    e("v_lshl_add_u32 v5, v%d, 10, v5" % vG)
    e("v_lshl_add_u32 v6, v%d, 10, v6" % vG)
    e("v_lshl_add_u32 v7, v%d, 10, v7" % vG)
    e("s_lshl_b32 s15, s%d, 8" % sCB)
    e("s_lshl_b32 s16, s%d, 16" % sRB)
    e("s_add_u32 s16, s16, s15")
    e("s_lshl_b32 s17, s%d, 14" % sW)
    e("s_add_u32 s16, s16, s17")
    e("s_lshl_b32 s18, s%d, 12" % sW)
    e("s_add_u32 s18, s18, %d" % WO)
    e("s_mul_i32 s19, s%d, %d" % (sRB, 28 * 1024))
    e("s_add_u32 s19, s19, s15")
    e("s_lshl_b32 s17, s%d, 13" % sW)
    e("s_add_u32 s19, s19, s17")
    e("s_lshl_b32 s17, s%d, 11" % sW)
    e("s_add_u32 s17, s17, %d" % W2)
    for t in range(4):
        dma(SWO, 5 + (t >> 1), 16, 18)
        if t < 3:
            e("s_add_u32 s16, s16, 4096")
            e("s_add_u32 s18, s18, 1024")
    for t in range(2):
        dma(SW2, 7, 19, 17)
        if t < 1:
            e("s_add_u32 s19, s19, 4096")
            e("s_add_u32 s17, s17, 1024")
    e("v_mov_b32 v6, v%d" % (T0 + 20))
    e("v_mov_b32 v9, v%d" % (T0 + 21))
    e("s_waitcnt vmcnt(6)")
    for kk in range(4):
        if kk: e("v_xor_b32 v7, %d, v6" % (64 * kk))
        for t in range(2):
            e("ds_read_b128 %s, v%d offset:%d" % (vr(KF + 16 * t + 4 * kk, 4), 7 if kk else 6, 4096 * t))
    for u in range(8):
        if u: e("v_xor_b32 v7, %d, v9" % (u << 5))
        e("ds_read_b64_tr_b16 %s, v%d" % (vr(VF + 4 * u, 2), 7 if u else 9))
        e("ds_read_b64_tr_b16 %s, v%d offset:4096" % (vr(VF + 4 * u + 2, 2), 7 if u else 9))
    tagtest([QG + 2 * k + 1 for k in range(8)], 10, 11)
    e("s_cbranch_vccz L_p1d")
    e("L_p1:")
    p1_issue()
    tagtest([QG + 2 * k + 1 for k in range(8)], 10, 11)
    loopctl("L_p1", "L_p1d")
    e("v_add_f32 v10, v%d, v%d" % (QG, QG + 4))
    e("v_add_f32 v11, v%d, v%d" % (QG + 2, QG + 6))
    e("v_add_f32 v12, v%d, v%d" % (QG + 8, QG + 12))
    e("v_add_f32 v13, v%d, v%d" % (QG + 10, QG + 14))
    e("v_add_f32 v10, v10, v12")
    e("v_add_f32 v11, v11, v13")
    e("v_cvt_pk_bf16_f32 v10, v10, v11")
    e("v_lshlrev_b32 v11, 2, v0")
    e("v_add_u32 v11, %d, v11" % QL)
    e("ds_write_b32 v11, v10")
    e("v_lshlrev_b32 v12, 8, v%d" % vB4)
    e("v_lshl_add_u32 v12, v%d, 4, v12" % vG)
    e("v_add_u32 v12, %d, v12" % QL)
    e("s_waitcnt lgkmcnt(0)")
    e("s_barrier")
    stamp("s%d" % sCNT)
    for kk in range(4):
        e("ds_read_b128 %s, v12 offset:%d" % (vr(QF + 4 * kk, 4), 64 * kk))
    e("s_waitcnt lgkmcnt(0)")
    if FINE: stamp()
    S = T0
    for t in range(2):
        for kk in range(4):
            mfma(S + 4 * t, KF + 16 * t + 4 * kk, QF + 4 * kk, kk == 0)
    nop(8)
    for k in range(0, 8, 2):
        e("v_cvt_pk_bf16_f32 v14, v%d, v%d" % (S + k, S + k + 1))
        e("v_and_b32 v15, 0xffff0000, v14")
        e("v_lshlrev_b32 v14, 16, v14")
        e("v_mul_f32 v14, 0x3db504f3, v14")
        e("v_mul_f32 v15, 0x3db504f3, v15")
        e("v_cvt_pk_bf16_f32 v14, v14, v15")
        e("v_and_b32 v15, 0xffff0000, v14")
        e("v_lshlrev_b32 v14, 16, v14")
        e("v_mul_f32 v%d, 0x3fb8aa3b, v14" % (S + k))
        e("v_mul_f32 v%d, 0x3fb8aa3b, v15" % (S + k + 1))
    e("v_max3_f32 v12, v%d, v%d, v%d" % (S, S + 1, S + 2))
    e("v_max3_f32 v12, v12, v%d, v%d" % (S + 3, S + 4))
    e("v_max3_f32 v12, v12, v%d, v%d" % (S + 5, S + 6))
    e("v_max_f32 v12, v12, v%d" % (S + 7))
    allreduce_rows("v_max_f32", [12], 14)
    for k in range(8):
        e("v_sub_f32 v%d, v%d, v12" % (S + k, S + k))
    for k in range(8):
        e("v_exp_f32 v%d, v%d" % (S + k, S + k))
    P = T0 + 8
    nop(1)
    if FINE: stamp()
    for k in range(4):
        e("v_cvt_pk_bf16_f32 v%d, v%d, v%d" % (P + k, S + 2 * k, S + 2 * k + 1))
    e("v_add_f32 v13, v%d, v%d" % (S, S + 1))
    nop(1)
    OACC = G0
    for u in range(8):
        e("v_mfma_f32_16x16x32_bf16 %s, %s, %s, 0" % (vr(OACC + 4 * u, 4), vr(VF + 4 * u, 4), vr(P, 4)))
    for k in range(2, 8):
        e("v_add_f32 v13, v13, v%d" % (S + k))
    allreduce_rows("v_add_f32", [13], 14)
    e("s_mul_i32 s13, s%d, 2112" % sW)
    e("s_add_u32 s13, s13, %d" % OBUF)
    e("v_mul_u32_u24 v5, 528, v%d" % vB4)
    e("v_lshl_add_u32 v5, v%d, 4, v5" % vG)
    e("v_add_u32 v5, s13, v5")
    e("s_lshl_b32 s13, s%d, 5" % sW)
    e("s_add_u32 s13, s13, %d" % OST)
    e("v_lshlrev_b32 v6, 3, v%d" % vB4)
    e("v_add_u32 v6, s13, v6")
    e("s_mov_b32 exec_lo, 0x000f000f")
    e("s_mov_b32 exec_hi, 0x000f000f")
    e("ds_write_b64 v6, v[12:13]")
    for u in range(8):
        e("ds_write_b128 v5, %s offset:%d" % (vr(OACC + 4 * u, 4), 64 * u))
    e("s_mov_b64 exec, -1")
    e("s_mul_i32 s13, s%d, 528" % sW)
    e("s_add_u32 s13, s13, %d" % OBUF)
    e("v_lshlrev_b32 v5, 3, v%d" % vLANE)
    e("v_add_u32 v5, s13, v5")
    e("s_lshl_b32 s13, s%d, 3" % sW)
    e("s_add_u32 s13, s13, %d" % OST)
    e("v_mov_b32 v6, s13")
    e("s_waitcnt lgkmcnt(0)")
    if FINE: stamp()
    e("s_barrier")
    if FINE: stamp()
    for w in range(4):
        e("ds_read_b64 %s, v6 offset:%d" % (vr(T0 + 8 + 2 * w, 2), 32 * w))
    for w in range(4):
        e("ds_read_b64 %s, v5 offset:%d" % (vr(T0 + 2 * w, 2), 2112 * w))
    R = T0 + 16
    e("v_mov_b32 v%d, s%d" % (R + 1, sT))
    e("v_mov_b32 v%d, s%d" % (R + 3, sT))
    e("v_mov_b32 v%d, s%d" % (R + 5, sT))
    e("v_mov_b32 v%d, s%d" % (R + 7, sT))
    e("s_waitcnt lgkmcnt(4)")
    M = T0 + 8
    e("v_max3_f32 v%d, v%d, v%d, v%d" % (R + 4, M, M + 2, M + 4))
    e("v_max_f32 v%d, v%d, v%d" % (R + 4, R + 4, M + 6))
    for w in range(4):
        e("v_sub_f32 v%d, v%d, v%d" % (M + 2 * w, M + 2 * w, R + 4))
    for w in range(4):
        e("v_exp_f32 v%d, v%d" % (M + 2 * w, M + 2 * w))
    e("s_waitcnt lgkmcnt(0)")
    e("v_mul_f32 v%d, v%d, v%d" % (R, M, T0))
    e("v_mul_f32 v%d, v%d, v%d" % (R + 2, M, T0 + 1))
    e("v_mul_f32 v%d, v%d, v%d" % (R + 6, M, M + 1))
    for w in range(1, 4):
        e("v_fmac_f32 v%d, v%d, v%d" % (R, M + 2 * w, T0 + 2 * w))
        e("v_fmac_f32 v%d, v%d, v%d" % (R + 2, M + 2 * w, T0 + 2 * w + 1))
        e("v_fmac_f32 v%d, v%d, v%d" % (R + 6, M + 2 * w, M + 2 * w + 1))
    e("buffer_store_dwordx4 %s, v%d, %s, s32 offen sc1" % (vr(R, 4), vL16, sr(SWS, 4)))
    e("buffer_store_dwordx4 %s, v%d, %s, s33 offen sc1" % (vr(R + 4, 4), vZ, sr(SWS, 4)))
    stamp()
    if int(os.environ.get("DELAY2", "0")):
        for _ in range(12): e("s_sleep 32")
        stamp()
    e("v_cmp_lt_u32 s[40:41], 27, v%d" % vLANE)
    OG, ST, HG = G0, G0 + 16, G0 + 48
    e("s_mov_b32 s%d, 0" % sCNT)
    e("v_lshlrev_b32 v5, 1, v%d" % vLANE)
    e("L_ph:")
    for m in range(8):
        e("s_add_u32 s18, s36, %d" % (65536 * m))
        e("buffer_load_dwordx2 %s, v%d, %s, s18 offen sc1" % (vr(HG + 2 * m, 2), vL8, sr(SWS, 4)))
    e("v_mov_b32 v9, s%d" % sT)
    e("s_waitcnt vmcnt(0)")
    for m in range(8):
        e("v_cndmask_b32 v%d, v%d, v9, s[40:41]" % (HG + 2 * m + 1, HG + 2 * m + 1))
    tagtest([HG + 2 * k + 1 for k in range(8)], 9, 10)
    loopctl("L_ph", "L_phd")
    def o_issue():
        for sp in range(8):
            e("s_add_u32 s18, s34, %d" % (4096 * sp))
            e("buffer_load_dwordx2 %s, v%d, %s, s18 offen sc1" % (vr(OG + 2 * sp, 2), vL8, sr(SWS, 4)))
        e("buffer_load_dwordx4 %s, v11, %s, s35 offen sc1" % (vr(ST, 4), sr(SWS, 4)))
    e("v_and_b32 v11, 7, v%d" % vLANE)
    e("v_lshlrev_b32 v11, 4, v11")
    o_issue()
    e("v_add_f32 v8, v%d, v%d" % (HG, HG + 2))
    for m in range(2, 8):
        e("v_add_f32 v8, v8, v%d" % (HG + 2 * m))
    rbf(8, 8, 9)
    e("v_lshlrev_b32 v9, 16, v%d" % vB1)
    e("v_add_f32 v8, v8, v9")
    rbf(8, 8, 9)
    e("v_mul_f32 v9, v8, v8")
    e("v_mul_f32 v9, 0x3d372713, v9")
    e("v_fma_f32 v9, v9, v8, v8")
    e("v_mul_f32 v9, 0x40135761, v9")
    e("v_exp_f32 v9, v9")
    nop(1)
    e("v_add_f32 v9, 1.0, v9")
    e("v_rcp_f32 v9, v9")
    nop(1)
    e("v_fma_f32 v8, -v8, v9, v8")
    e("v_cvt_pk_bf16_f32 v8, v8, v8")
    e("v_cndmask_b32 v8, v8, 0, s[40:41]")
    e("s_lshl_b32 s13, s%d, 6" % sW)
    e("s_add_u32 s13, s13, %d" % HAL)
    e("v_add_u32 v6, s13, v5")
    e("s_mov_b64 exec, 0xffffffff")
    e("ds_write_b16 v6, v8")
    e("s_mov_b64 exec, -1")
    e("v_mov_b32 v13, 0")
    for k in range(16):
        e("v_lshlrev_b32 v14, 16, v%d" % (GW + k))
        e("v_and_b32 v15, 0xffff0000, v%d" % (GW + k))
        e("v_lshlrev_b32 v6, 16, v%d" % (XA + k))
        e("v_and_b32 v7, 0xffff0000, v%d" % (XA + k))
        e("v_mul_f32 v14, v14, v6")
        e("v_mul_f32 v15, v15, v7")
        e("v_cvt_pk_bf16_f32 v14, v14, v15")
        e("v_and_b32 v15, 0xffff0000, v14")
        e("v_lshlrev_b32 v14, 16, v14")
        e("v_add_f32 v13, v13, v14")
        e("v_add_f32 v13, v13, v15")
    allreduce_ror("v_add_f32", [13])
    allreduce_rows("v_add_f32", [13], 14)
    rbf(13, 13, 14)
    e("v_mul_f32 v13, 0xbfb8aa3b, v13")
    e("v_exp_f32 v13, v13")
    nop(1)
    e("v_add_f32 v13, 1.0, v13")
    e("v_rcp_f32 v13, v13")
    nop(1)
    rbf(vGATE, 13, 14)
    e("s_mov_b32 s%d, 0" % sCNT)
    otags = [OG + 2 * sp + 1 for sp in range(8)] + [ST + 1, ST + 3]
    e("s_waitcnt vmcnt(0)")
    tagtest(otags, 9, 10)
    e("s_cbranch_vccz L_p2d")
    e("L_p2:")
    o_issue()
    e("s_waitcnt vmcnt(0)")
    tagtest(otags, 9, 10)
    loopctl("L_p2", "L_p2d")
    stamp("s%d" % sCNT)
    e("v_mov_b32 v12, v%d" % ST)
    for m in ("quad_perm:[1,0,3,2]", "quad_perm:[2,3,0,1]", "row_half_mirror"):
        nop(2)
        e("v_max_f32_dpp v12, v12, v12 %s row_mask:0xf bank_mask:0xf" % m)
    e("v_sub_f32 v12, v%d, v12" % ST)
    e("v_exp_f32 v12, v12")
    nop(1)
    e("v_mul_f32 v13, v12, v%d" % (ST + 2))
    for k in range(8):
        e("v_readlane_b32 s%d, v12, %d" % (92 + k if not DBG else 60 + k, k))
    for m in ("quad_perm:[1,0,3,2]", "quad_perm:[2,3,0,1]", "row_half_mirror"):
        nop(2)
        e("v_add_f32_dpp v13, v13, v13 %s row_mask:0xf bank_mask:0xf" % m)
    wb = 92 if not DBG else 60
    e("v_mul_f32 v14, s%d, v%d" % (wb, OG))
    for sp in range(1, 8):
        e("v_fmac_f32 v14, s%d, v%d" % (wb + sp, OG + 2 * sp))
    e("v_rcp_f32 v15, v13")
    nop(1)
    e("v_mul_f32 v12, v14, v15")
    e("v_fma_f32 v14, -v12, v13, v14")
    e("v_fma_f32 v12, v14, v15, v12")
    e("v_cvt_pk_bf16_f32 v12, v12, v12")
    e("s_lshl_b32 s13, s%d, 7" % sW)
    e("s_add_u32 s13, s13, %d" % OA)
    e("v_add_u32 v6, s13, v5")
    e("ds_write_b16 v6, v12")
    e("v_lshlrev_b32 v5, 7, v%d" % vB4)
    e("v_lshl_add_u32 v5, v%d, 4, v5" % vG)
    e("v_add_u32 v5, %d, v5" % OA)
    e("v_lshlrev_b32 v6, 6, v%d" % vB4)
    e("v_lshl_add_u32 v6, v%d, 4, v6" % vG)
    e("v_add_u32 v6, %d, v6" % HAL)
    e("v_lshl_add_u32 v8, v%d, 3, v%d" % (vG, vR))
    e("v_lshlrev_b32 v8, 8, v8")
    e("v_lshl_add_u32 v8, v%d, 3, v8" % vB4)
    e("v_and_b32 v9, 1, v%d" % vG)
    e("v_lshl_or_b32 v9, v9, 2, v%d" % vR)
    e("s_lshl_b32 s13, s%d, 1" % sW)
    e("v_xor_b32 v9, s13, v9")
    e("v_lshl_add_u32 v8, v9, 5, v8")
    e("v_add_u32 v8, %d, v8" % WO)
    e("v_xor_b32 v9, 32, v8")
    e("s_waitcnt lgkmcnt(0)")
    e("s_barrier")
    HA = T0; AO = T0 + 4
    e("ds_read_b128 %s, v5" % vr(AO, 4))
    e("ds_read_b128 %s, v5 offset:64" % vr(AO + 4, 4))
    e("ds_read_b128 %s, v6" % vr(HA, 4))
    BO = G0; BM = G0 + 16
    for ct in range(2):
        for kk in range(2):
            e("ds_read_b64_tr_b16 %s, v%d offset:%d" % (vr(BO + 8 * ct + 4 * kk, 2), 8 + ct, kk * 8192))
            e("ds_read_b64_tr_b16 %s, v%d offset:%d" % (vr(BO + 8 * ct + 4 * kk + 2, 2), 8 + ct, kk * 8192 + 1024))
        e("ds_read_b64_tr_b16 %s, v%d offset:%d" % (vr(BM + 4 * ct, 2), 8 + ct, W2 - WO))
        e("ds_read_b64_tr_b16 %s, v%d offset:%d" % (vr(BM + 4 * ct + 2, 2), 8 + ct, W2 - WO + 1024))
    RR = G0 + 40
    for k in (1, 3, 5, 7):
        e("v_mov_b32 v%d, s%d" % (RR + k, sT))
    e("s_waitcnt lgkmcnt(0)")
    DA = G0 + 24; DM = G0 + 32
    for ct in range(2):
        for kk in range(2):
            mfma(DA + 4 * ct, AO + 4 * kk, BO + 8 * ct + 4 * kk, kk == 0)
        mfma(DM + 4 * ct, HA, BM + 4 * ct, True)
    nop(5)
    for ct in range(2):
        select_g(RR + 4 * ct, DA + 4 * ct)
        if ct == 1: nop(1)
        select_g(RR + 4 * ct + 2, DM + 4 * ct)
        e("buffer_store_dwordx4 %s, v%d, %s, s%d offen sc1" % (vr(RR + 4 * ct, 4), vPP, sr(SWS, 4), 37 + ct))
    stamp()
    if int(os.environ.get("DELAY2", "0")):
        for _ in range(12): e("s_sleep 32")
        stamp()
    e("s_lshl_b32 s15, s%d, 6" % sW)
    e("s_add_u32 s15, s15, %d" % FR)
    e("v_lshlrev_b32 v6, 4, v%d" % vB4)
    e("v_add_u32 v6, s15, v6")
    F = G0
    e("s_mov_b32 s%d, 0" % sCNT)
    e("L_p3:")
    e("buffer_load_dwordx4 %s, v%d, %s, s39 offen sc1" % (vr(F, 4), vL32, sr(SWS, 4)))
    e("buffer_load_dwordx4 %s, v%d, %s, s39 offen offset:16 sc1" % (vr(F + 4, 4), vL32, sr(SWS, 4)))
    e("s_waitcnt vmcnt(0)")
    tagtest([F + 1, F + 3, F + 5, F + 7], 9, 10)
    loopctl("L_p3", "L_p3d")
    stamp("s%d" % sCNT)
    e("v_mov_b32 v%d, v%d" % (F + 1, F + 2))
    e("v_mov_b32 v%d, v%d" % (F + 2, F + 4))
    e("v_mov_b32 v%d, v%d" % (F + 3, F + 6))
    vs = [F, F + 1, F + 2, F + 3]
    allreduce_ror("v_add_f32", vs)
    allreduce_rows("v_add_f32", vs, F + 8)
    e("ds_write_b128 v6, %s" % vr(F, 4))
    e("s_waitcnt lgkmcnt(0)")
    e("s_barrier")
    e("s_cmp_lg_u32 s%d, 0" % sW)
    e("s_cbranch_scc1 L_end")
    e("v_and_b32 v5, 7, v%d" % vLANE)
    e("v_lshlrev_b32 v5, 3, v5")
    e("v_add_u32 v5, %d, v5" % FR)
    for w in range(4):
        e("ds_read_b64 %s, v5 offset:%d" % (vr(F + 2 * w, 2), 64 * w))
    e("s_lshl_b32 s13, s%d, 8" % sCB)
    e("s_lshl_b32 s14, s%d, 2" % sRB)
    e("s_add_u32 s13, s13, s14")
    e("v_and_b32 v6, 1, v%d" % vR)
    e("v_lshlrev_b32 v6, 1, v6")
    e("v_lshl_add_u32 v6, v%d, 10, v6" % vB4)
    e("v_sub_f32 v12, 1.0, v%d" % vGATE)
    rbf(12, 12, 15)
    e("v_lshlrev_b32 v11, 16, v%d" % vB2)
    e("s_waitcnt lgkmcnt(0)")
    e("v_add_f32 v13, v%d, v%d" % (F, F + 2))
    e("v_add_f32 v14, v%d, v%d" % (F + 1, F + 3))
    e("v_add_f32 v13, v13, v%d" % (F + 4))
    e("v_add_f32 v14, v14, v%d" % (F + 5))
    e("v_add_f32 v13, v13, v%d" % (F + 6))
    e("v_add_f32 v14, v14, v%d" % (F + 7))
    rbf(13, 13, 15)
    rbf(14, 14, 15)
    e("v_add_f32 v14, v14, v11")
    rbf(14, 14, 15)
    e("v_mul_f32 v13, v%d, v13" % vGATE)
    rbf(13, 13, 15)
    e("v_mul_f32 v14, v12, v14")
    rbf(14, 14, 15)
    e("v_add_f32 v13, v13, v14")
    e("v_cvt_pk_bf16_f32 v13, v13, v13")
    e("s_mov_b64 exec, 0xff")
    e("buffer_store_short v13, v6, %s, s13 offen" % sr(SOUT, 4))
    e("s_mov_b64 exec, -1")
    stamp()
    e("s_cmp_lg_u32 s2, 0")
    e("s_cbranch_scc1 L_end")
    e("v_mov_b32 v5, 0")
    e("v_mov_b32 v6, s%d" % sT)
    e("buffer_store_dword v6, v5, %s, 0 offen" % sr(SWS, 4))
    if DBG:
        e("s_memrealtime s[16:17]")
        e("s_memtime s[18:19]")
        e("s_waitcnt lgkmcnt(0)")
        e("s_sub_u32 s16, s16, s92")
        e("s_sub_u32 s18, s18, s94")
        e("v_mov_b32 v6, s16")
        e("v_mov_b32 v7, s18")
        e("buffer_store_dwordx2 v[6:7], v5, s[96:99], 0 offen")
    e("L_end:")
    e("s_endpgm")

body()
text = HEADER + "; @launch grid=(256,1,1) block=(256,1,1) lds=%d\n" % LDS_BYTES
text += """.amdgcn_target "amdgcn-amd-amdhsa--gfx950"
.text
.globl {n}_kernel
.p2align 8
.type {n}_kernel,@function
{n}_kernel:
""".format(n=NAME)
text += "\n".join(out) + "\n"
text += """.section .rodata,"a"
.p2align 6
.amdhsa_kernel {n}_kernel
  .amdhsa_next_free_vgpr 256
  .amdhsa_next_free_sgpr 102
  .amdhsa_accum_offset 256
  .amdhsa_group_segment_fixed_size 0
  .amdhsa_kernarg_size 112
  .amdhsa_user_sgpr_count 2
  .amdhsa_user_sgpr_kernarg_segment_ptr 1
  .amdhsa_system_sgpr_workgroup_id_x 1
  .amdhsa_float_denorm_mode_32 3
.end_amdhsa_kernel
""".format(n=NAME)
path = sys.argv[1] if len(sys.argv) > 1 else "cdna_kernels/%s.s" % NAME
open(path, "w").write(text)
print("wrote", path, len(out), "lines")
```

```python
import sys, os

NAME = "gated_mix__sliding_block_cached__mixer_channel_mlp__decode"
HEADER = open("cdna_kernels/%s.s.ref" % NAME).read().split("; Override launch geometry")[0]

LDS_BYTES = 132 * 1024
XL = 0x1F000; GL = 0x20000
WQ = 0x0000; W1 = 0x4000; KK = 0x6000; VV = 0xE000; WO = 0x16000; W2 = 0x1A000
SC = 0x1C000
QL = SC; OST = SC + 0x400; OA = SC + 0x500; HAL = SC + 0x700; FR = SC + 0x800; OBUF = SC + 0x1000
QB = 0x10000; HB = 0x90000; SB = 0x110000; OB = 0x120000; PB = 0x220000; WS_END = 0x420000
LIMIT = 20000
STAMP = int(os.environ.get("STAMP", "0"))
DBG = int(os.environ.get("DBG", "0"))
if STAMP: WS_END = 0x900000

out = []
def e(s=""):
    out.append("    " + s if s and not s.endswith(":") else s)
def nop(n):
    while n > 0:
        k = min(n, 16)
        e("s_nop %d" % (k - 1)); n -= k
def vr(a, n): return "v[%d:%d]" % (a, a + n - 1)
def sr(a, n): return "s[%d:%d]" % (a, a + n - 1)

sKVH, sJ, sB, sS, sW, sRB, sCB, sT, sCNT = 4, 5, 6, 7, 8, 9, 10, 11, 12
SX, SK, SV, SWQ, SWO, SW1, SB1, SW2, SB2, SGW, SOUT, SWS = 44, 48, 52, 56, 60, 64, 68, 72, 76, 80, 84, 88
vLANE, vG, vN, vB4 = 1, 2, 3, 4
vGATE, vB1, vB2, vR = 16, 17, 18, 19
vTA = 243
vQP, vHP, vT16, vL16, vL8, vL32, vZ, vPP = 244, 245, 246, 247, 248, 249, 250, 251
PRETOUCH = int(os.environ.get("PRETOUCH", "0"))
NPT = 28 if PRETOUCH else 0
XF, XM, XA, GW = 20, 36, 44, 60
KF, VF = 76, 108
QF = 140
G0 = 156
T0 = 220

stamp_n = [0]
def stamp(extra=None):
    if not STAMP: return
    k = stamp_n[0]; stamp_n[0] += 1
    e("s_memrealtime s[96:97]")
    e("s_lshl_b32 s98, s2, 2")
    e("s_add_u32 s98, s98, s%d" % sW)
    e("s_lshl_b32 s98, s98, 7")
    e("s_add_u32 s98, s98, 0x800000")
    e("s_waitcnt lgkmcnt(0)")
    e("v_mov_b32 v252, s96")
    e("v_mov_b32 v253, %s" % (extra if extra else "0"))
    e("v_mov_b32 v254, 0")
    e("buffer_store_dwordx2 v[252:253], v254, s[88:91], s98 offen offset:%d" % (8 * k))

def rbf(dst, src, tmp):
    e("v_cvt_pk_bf16_f32 v%d, v%d, v%d" % (tmp, src, src))
    e("v_lshlrev_b32 v%d, 16, v%d" % (dst, tmp))

def allreduce_rows(op, vs, t):
    for sw in ("v_permlane16_swap_b32", "v_permlane32_swap_b32"):
        for i, v in enumerate(vs):
            e("v_mov_b32 v%d, v%d" % (t + i, v))
        nop(max(0, 3 - len(vs)))
        for i, v in enumerate(vs):
            e("%s v%d, v%d" % (sw, v, t + i))
        for i, v in enumerate(vs):
            e("%s v%d, v%d, v%d" % (op, v, v, t + i))

def allreduce_ror(op, vs):
    for r in (4, 8):
        nop(2 if r == 4 else max(0, 3 - len(vs)))
        for v in vs:
            e("%s_dpp v%d, v%d, v%d row_ror:%d row_mask:0xf bank_mask:0xf" % (op, v, v, v, r))

def tagtest(tags, vmin, vmax):
    t = list(tags)
    for op, acc in (("v_min3_u32", vmin), ("v_max3_u32", vmax)):
        r = list(t)
        e("%s v%d, v%d, v%d, v%d" % (op, acc, r[0], r[1], r[2])); r = r[3:]
        while len(r) >= 2:
            e("%s v%d, v%d, v%d, v%d" % (op, acc, acc, r[0], r[1])); r = r[2:]
        if r:
            e("%s v%d, v%d, v%d" % (op.replace("3_", "_"), acc, acc, r[0]))
    e("v_xor_b32 v%d, s%d, v%d" % (vmin, sT, vmin))
    e("v_xor_b32 v%d, s%d, v%d" % (vmax, sT, vmax))
    e("v_or_b32 v%d, v%d, v%d" % (vmin, vmin, vmax))
    e("v_cmp_ne_u32 vcc, 0, v%d" % vmin)

def loopctl(label, done):
    e("s_add_u32 s%d, s%d, 1" % (sCNT, sCNT))
    e("s_cmp_lt_u32 s%d, %d" % (sCNT, LIMIT))
    e("s_cbranch_scc0 %s" % done)
    e("s_cbranch_vccnz %s" % label)
    e("%s:" % done)

def dma(srd, vaddr, soff, ldsaddr_s, flags=" nt"):
    e("s_mov_b32 m0, s%d" % ldsaddr_s)
    e("s_nop 0")
    e("buffer_load_dwordx4 v%d, %s, s%d offen%s lds" % (vaddr, sr(srd, 4), soff, flags))

def mfma(d, a, b, first):
    e("v_mfma_f32_16x16x32_bf16 %s, %s, %s, %s" % (vr(d, 4), vr(a, 4), vr(b, 4), "0" if first else vr(d, 4)))

def select_g(dst, src):
    e("v_cndmask_b32 v%d, v%d, v%d, s[20:21]" % (dst, src, src + 1))
    e("v_cndmask_b32 v%d, v%d, v%d, s[22:23]" % (dst, dst, src + 2))
    e("v_cndmask_b32 v%d, v%d, v%d, s[24:25]" % (dst, dst, src + 3))

KVMODE = os.environ.get("KVMODE", "A")
def kv_base():
    e("s_lshl_b32 s16, s%d, 3" % sB)
    e("s_add_u32 s16, s16, s%d" % sKVH)
    e("s_lshl_b32 s16, s16, 12")
    e("s_lshl_b32 s17, s%d, 7" % sS)
    e("s_add_u32 s16, s16, s17")
    e("s_lshl_b32 s17, s%d, 5" % sW)
    e("s_add_u32 s16, s16, s17")
    e("s_add_u32 s16, s16, 3072")
    e("s_lshl_b32 s16, s16, 8")
    e("s_mov_b32 s17, s16")
def k_dma():
    kv_base()
    e("v_xor_b32 v5, v%d, v%d" % (vN, vG))
    e("v_lshlrev_b32 v5, 4, v5")
    e("v_lshl_add_u32 v5, v%d, 8, v5" % vG)
    e("v_xor_b32 v6, 64, v5")
    e("v_xor_b32 v7, 0x80, v5")
    e("v_xor_b32 v8, 0xc0, v5")
    e("s_lshl_b32 s18, s%d, 13" % sW)
    e("s_add_u32 s18, s18, %d" % KK)
    for t in range(8):
        dma(SK, 5 + (t & 3), 16, 18)
        if t < 7:
            e("s_add_u32 s16, s16, 1024")
            e("s_add_u32 s18, s18, 1024")
def v_dma():
    kv_base()
    e("v_lshlrev_b32 v7, 1, v%d" % vG)
    e("v_xor_b32 v5, v%d, v7" % vN)
    e("v_xor_b32 v6, 8, v5")
    e("v_lshlrev_b32 v5, 4, v5")
    e("v_lshlrev_b32 v6, 4, v6")
    e("v_lshl_add_u32 v5, v%d, 8, v5" % vG)
    e("v_lshl_add_u32 v6, v%d, 8, v6" % vG)
    e("s_lshl_b32 s18, s%d, 13" % sW)
    e("s_add_u32 s18, s18, %d" % VV)
    for t in range(8):
        dma(SV, 5 + (t & 1), 17, 18)
        if t < 7:
            e("s_add_u32 s17, s17, 1024")
            e("s_add_u32 s18, s18, 1024")
def KV_EARLY():
    if KVMODE in ("0", "B"): k_dma()
    if KVMODE == "0": v_dma()
def KV_LATE():
    if KVMODE == "A": k_dma()
    if KVMODE in ("A", "B"): v_dma()
NEARLY = {"0": 16, "B": 8, "A": 0}[KVMODE]

def body():
    e("s_cmp_ge_u32 s2, 256")
    e("s_cbranch_scc1 L_end")
    e("s_load_dwordx16 s[16:31], s[0:1], 0")
    e("s_load_dwordx8 s[32:39], s[0:1], 64")
    e("s_load_dwordx4 s[40:43], s[0:1], 96")
    e("v_and_b32 v%d, 63, v0" % vLANE)
    e("v_lshrrev_b32 v5, 6, v0")
    e("v_lshrrev_b32 v%d, 4, v%d" % (vG, vLANE))
    e("v_and_b32 v%d, 15, v0" % vN)
    e("v_and_b32 v%d, 3, v0" % vB4)
    e("v_readfirstlane_b32 s%d, v5" % sW)
    e("v_bfe_u32 v%d, v0, 2, 2" % vR)
    e("s_and_b32 s%d, s2, 7" % sKVH)
    e("s_lshr_b32 s%d, s2, 3" % sJ)
    e("s_lshr_b32 s%d, s%d, 3" % (sB, sJ))
    e("s_and_b32 s%d, s%d, 7" % (sS, sJ))
    e("s_lshl_b32 s%d, s%d, 3" % (sRB, sKVH))
    e("s_add_u32 s%d, s%d, s%d" % (sRB, sRB, sS))
    e("s_mov_b32 s%d, s%d" % (sCB, sB))
    e("s_waitcnt lgkmcnt(0)")
    e("s_load_dword s%d, s[42:43], 0" % sT)
    srds = [(SX, 16, 4096), (SK, 18, 33554432), (SV, 20, 33554432), (SWQ, 22, 4194304), (SWO, 24, 4194304),
            (SW1, 28, 1835008), (SB1, 30, 3584), (SW2, 32, 1835008), (SB2, 34, 1024), (SGW, 36, 1024),
            (SOUT, 38, 4096), (SWS, 42, WS_END)]
    for d, p, n in srds:
        e("s_mov_b32 s%d, s%d" % (d, p))
        e("s_and_b32 s%d, s%d, 0xffff" % (d + 1, p + 1))
        e("s_mov_b32 s%d, %d" % (d + 2, n))
        e("s_mov_b32 s%d, 0x00020000" % (d + 3))
    stamp()
    if DBG:
        e("s_memrealtime s[92:93]")
        e("s_memtime s[94:95]")
        e("s_mov_b32 s96, s40"); e("s_and_b32 s97, s41, 0xffff"); e("s_mov_b32 s98, 256"); e("s_mov_b32 s99, 0x00020000")
    e("v_lshlrev_b32 v10, 4, v%d" % vLANE)
    e("s_lshl_b32 s13, s%d, 10" % sW)
    e("s_add_u32 s18, s13, %d" % XL)
    dma(SX, 10, 13, 18, flags="")
    e("s_mov_b32 s13, 0")
    e("s_mov_b32 s18, %d" % GL)
    dma(SGW, 10, 13, 18, flags="")
    e("s_mul_i32 s13, s%d, 56" % sRB)
    e("v_lshlrev_b32 v11, 1, v%d" % vLANE)
    e("buffer_load_ushort v%d, v11, %s, s13 offen" % (vB1, sr(SB1, 4)))
    e("s_lshl_b32 s13, s%d, 8" % sCB)
    e("s_lshl_b32 s14, s%d, 2" % sRB)
    e("s_add_u32 s13, s13, s14")
    e("v_and_b32 v11, 1, v%d" % vR)
    e("v_lshlrev_b32 v11, 1, v11")
    e("buffer_load_ushort v%d, v11, %s, s13 offen" % (vB2, sr(SB2, 4)))
    e("v_lshrrev_b32 v5, 3, v%d" % vLANE)
    e("v_and_b32 v6, 7, v%d" % vLANE)
    e("v_lshrrev_b32 v7, 4, v%d" % vLANE)
    e("v_and_b32 v7, 1, v7")
    e("v_lshlrev_b32 v7, 1, v7")
    e("v_xor_b32 v6, v6, v7")
    e("v_xor_b32 v7, 4, v6")
    e("v_lshlrev_b32 v8, 13, v5")
    e("v_lshl_add_u32 v9, v7, 4, v8")
    e("v_lshl_add_u32 v8, v6, 4, v8")
    e("s_lshl_b32 s16, s%d, 20" % sB)
    e("s_lshl_b32 s17, s%d, 18" % sW)
    e("s_add_u32 s16, s16, s17")
    e("s_lshl_b32 s17, s%d, 7" % sRB)
    e("s_add_u32 s16, s16, s17")
    e("s_lshl_b32 s18, s%d, 12" % sW)
    for t in range(4):
        dma(SWQ, 8 + (t & 1), 16, 18)
        if t < 3:
            e("s_add_u32 s16, s16, %d" % (8 * 8192))
            e("s_add_u32 s18, s18, 1024")
    e("s_min_u32 s14, s%d, 27" % sJ)
    e("s_mov_b32 s15, 3584")
    e("v_mul_lo_u32 v8, v5, s15")
    e("v_lshl_add_u32 v9, v7, 4, v8")
    e("v_lshl_add_u32 v8, v6, 4, v8")
    e("s_mul_i32 s16, s%d, %d" % (sKVH, 64 * 3584))
    e("s_mul_i32 s17, s%d, %d" % (sW, 16 * 3584))
    e("s_add_u32 s16, s16, s17")
    e("s_lshl_b32 s17, s14, 7")
    e("s_add_u32 s16, s16, s17")
    e("s_lshl_b32 s18, s%d, 11" % sW)
    e("s_add_u32 s18, s18, %d" % W1)
    for t in range(2):
        dma(SW1, 8 + t, 16, 18)
        if t == 0:
            e("s_add_u32 s16, s16, %d" % (8 * 3584))
            e("s_add_u32 s18, s18, 1024")
    KV_EARLY()
    e("s_lshl_b32 s26, s%d, 15" % sB)
    e("s_lshl_b32 s14, s%d, 12" % sKVH)
    e("s_add_u32 s26, s26, s14")
    e("s_add_u32 s26, s26, %d" % QB)
    e("s_add_u32 s27, s26, 0x20000")
    e("s_add_u32 s28, s26, 0x40000")
    e("s_add_u32 s29, s26, 0x60000")
    e("s_lshl_b32 s30, s%d, 17" % sB)
    e("s_lshl_b32 s14, s%d, 9" % sRB)
    e("s_add_u32 s30, s30, s14")
    e("s_lshl_b32 s14, s%d, 7" % sW)
    e("s_add_u32 s30, s30, s14")
    e("s_add_u32 s30, s30, %d" % QB)
    e("s_lshl_b32 s31, s%d, 16" % sKVH)
    e("s_lshl_b32 s15, s%d, 9" % sJ)
    e("s_add_u32 s31, s31, s15")
    e("s_add_u32 s31, s31, s14")
    e("s_add_u32 s31, s31, %d" % HB)
    e("s_lshl_b32 s13, s%d, 3" % sB)
    e("s_add_u32 s13, s13, s%d" % sKVH)
    e("s_lshl_b32 s32, s13, 3")
    e("s_add_u32 s32, s32, s%d" % sS)
    e("s_lshl_b32 s32, s32, 12")
    e("s_lshl_b32 s16, s%d, 10" % sW)
    e("s_add_u32 s32, s32, s16")
    e("s_add_u32 s32, s32, %d" % OB)
    e("s_lshl_b32 s33, s13, 2")
    e("s_add_u32 s33, s33, s%d" % sW)
    e("s_lshl_b32 s33, s33, 3")
    e("s_add_u32 s33, s33, s%d" % sS)
    e("s_lshl_b32 s33, s33, 4")
    e("s_add_u32 s33, s33, %d" % SB)
    e("s_lshl_b32 s13, s%d, 3" % sW)
    e("s_add_u32 s13, s13, s%d" % sKVH)
    e("s_lshr_b32 s17, s%d, 1" % sS)
    e("s_lshl_b32 s34, s13, 15")
    e("s_lshl_b32 s16, s17, 10")
    e("s_add_u32 s34, s34, s16")
    e("s_and_b32 s16, s%d, 1" % sS)
    e("s_lshl_b32 s16, s16, 9")
    e("s_add_u32 s34, s34, s16")
    e("s_add_u32 s34, s34, %d" % OB)
    e("s_lshl_b32 s35, s13, 2")
    e("s_add_u32 s35, s35, s17")
    e("s_lshl_b32 s35, s35, 7")
    e("s_add_u32 s35, s35, %d" % SB)
    e("s_mul_i32 s36, s%d, 224" % sRB)
    e("s_lshl_b32 s14, s%d, 14" % sW)
    e("s_add_u32 s36, s36, s14")
    e("s_add_u32 s36, s36, %d" % HB)
    e("s_lshl_b32 s37, s%d, 19" % sCB)
    e("s_lshl_b32 s15, s%d, 17" % sW)
    e("s_add_u32 s39, s37, %d" % PB)
    e("s_add_u32 s37, s37, s15")
    e("s_lshl_b32 s15, s%d, 7" % sRB)
    e("s_add_u32 s37, s37, s15")
    e("s_add_u32 s37, s37, %d" % PB)
    e("s_add_u32 s38, s37, 65536")
    e("s_lshl_b32 s15, s%d, 13" % sRB)
    e("s_add_u32 s39, s39, s15")
    e("s_lshl_b32 s15, s%d, 11" % sW)
    e("s_add_u32 s39, s39, s15")
    e("v_lshlrev_b32 v%d, 15, v%d" % (vQP, vG))
    e("v_lshl_add_u32 v%d, v%d, 3, v%d" % (vQP, vN, vQP))
    e("v_lshlrev_b32 v%d, 14, v%d" % (vHP, vG))
    e("v_lshl_add_u32 v%d, v%d, 3, v%d" % (vHP, vN, vHP))
    e("v_lshlrev_b32 v%d, 4, v0" % vT16)
    e("v_lshlrev_b32 v%d, 4, v%d" % (vL16, vLANE))
    e("v_lshlrev_b32 v%d, 3, v%d" % (vL8, vLANE))
    e("v_lshlrev_b32 v%d, 5, v%d" % (vL32, vLANE))
    e("v_mov_b32 v%d, 0" % vZ)
    e("v_lshrrev_b32 v%d, 1, v%d" % (vPP, vN))
    e("v_lshlrev_b32 v%d, 13, v%d" % (vPP, vPP))
    e("v_and_b32 v6, 1, v%d" % vN)
    e("v_lshl_add_u32 v%d, v6, 6, v%d" % (vPP, vPP))
    e("v_lshl_add_u32 v%d, v%d, 4, v%d" % (vPP, vG, vPP))
    if PRETOUCH:
        D = KF
        def touch(v, so):
            e("buffer_load_dword v%d, v%d, %s, s%d offen sc1" % (D, v, sr(SWS, 4), so))
        for r in range(4): touch(vT16, 26 + r)
        touch(vQP, 30); touch(vHP, 31); touch(vL16, 32); touch(vZ, 33); touch(vZ, 35)
        for k in range(8):
            e("s_add_u32 s18, s34, %d" % (4096 * k)); touch(vL8, 18)
        for k in range(8):
            e("s_add_u32 s18, s36, %d" % (65536 * k)); touch(vL8, 18)
        touch(vPP, 37); touch(vPP, 38); touch(vL32, 39)
    e("v_cmp_eq_u32 s[20:21], 1, v%d" % vG)
    e("v_cmp_eq_u32 s[22:23], 2, v%d" % vG)
    e("v_cmp_eq_u32 s[24:25], 3, v%d" % vG)
    e("s_waitcnt lgkmcnt(0)")
    e("s_add_u32 s%d, s%d, 1" % (sT, sT))
    e("v_lshl_add_u32 v9, v%d, 3, v%d" % (vG, vR))
    e("v_lshlrev_b32 v10, 7, v9")
    e("v_lshl_add_u32 v10, v%d, 3, v10" % vB4)
    e("v_lshrrev_b32 v11, 1, v%d" % vR)
    e("v_and_b32 v12, 1, v%d" % vG)
    e("v_lshl_or_b32 v11, v12, 1, v11")
    e("v_xor_b32 v11, s%d, v11" % sW)
    e("v_lshl_add_u32 v10, v11, 5, v10")
    e("v_mov_b32 v%d, v10" % vTA)
    e("v_lshlrev_b32 v10, 10, v%d" % vB4)
    e("v_lshl_add_u32 v10, v%d, 4, v10" % vG)
    e("s_lshl_b32 s13, s%d, 8" % sB)
    e("s_add_u32 s13, s13, %d" % XL)
    e("v_add_u32 v11, s13, v10")
    e("s_lshl_b32 s13, s%d, 7" % sKVH)
    e("s_add_u32 s13, s13, %d" % XL)
    e("v_add_u32 v10, s13, v10")
    e("v_lshrrev_b32 v12, 2, v%d" % vLANE)
    e("v_lshlrev_b32 v12, 6, v12")
    e("v_lshl_add_u32 v13, v%d, 10, v12" % vB4)
    e("v_add_u32 v13, %d, v13" % XL)
    e("v_add_u32 v12, %d, v12" % GL)
    e("s_waitcnt vmcnt(%d)" % (8 + NEARLY + NPT))
    e("s_barrier")
    for k in range(4):
        e("ds_read_b128 %s, v13 offset:%d" % (vr(XA + 4 * k, 4), 16 * k))
    for k in range(4):
        e("ds_read_b128 %s, v12 offset:%d" % (vr(GW + 4 * k, 4), 16 * k))
    for kk in range(2):
        e("ds_read_b128 %s, v10 offset:%d" % (vr(XM + 4 * kk, 4), 64 * kk))
    for kk in range(4):
        e("ds_read_b128 %s, v11 offset:%d" % (vr(XF + 4 * kk, 4), 64 * kk))
    KV_LATE()
    e("s_waitcnt lgkmcnt(0)")
    e("v_mov_b32 v10, v%d" % vTA)
    e("s_waitcnt vmcnt(%d)" % (16 + NPT))
    e("s_barrier")
    stamp()
    BF = G0
    for kk in range(4):
        e("ds_read_b64_tr_b16 %s, v10 offset:%d" % (vr(BF + 4 * kk, 2), WQ + kk * 4096))
        e("ds_read_b64_tr_b16 %s, v10 offset:%d" % (vr(BF + 4 * kk + 2, 2), WQ + kk * 4096 + 512))
    e("v_mov_b32 v%d, s%d" % (T0 + 5, sT))
    e("s_waitcnt lgkmcnt(0)")
    for kk in range(4):
        mfma(T0, XF + 4 * kk, BF + 4 * kk, kk == 0)
    nop(8)
    select_g(T0 + 4, T0)
    e("buffer_store_dwordx2 %s, v%d, %s, s30 offen sc1" % (vr(T0 + 4, 2), vQP, sr(SWS, 4)))
    stamp()
    U = G0
    for k in range(16):
        e("v_lshlrev_b32 v%d, 16, v%d" % (U + 2 * k, XA + k))
        e("v_and_b32 v%d, 0xffff0000, v%d" % (U + 2 * k + 1, XA + k))
    e("v_mov_b32 v12, 0")
    e("v_mov_b32 v13, 0")
    for k in range(16):
        e("v_lshlrev_b32 v14, 16, v%d" % (GW + k))
        e("v_and_b32 v15, 0xffff0000, v%d" % (GW + k))
        e("v_mul_f32 v14, v14, v%d" % (U + 2 * k))
        e("v_mul_f32 v15, v15, v%d" % (U + 2 * k + 1))
        e("v_cvt_pk_bf16_f32 v14, v14, v15")
        e("v_and_b32 v15, 0xffff0000, v14")
        e("v_lshlrev_b32 v14, 16, v14")
        e("v_add_f32 v13, v13, v14")
        e("v_add_f32 v13, v13, v15")
        e("v_add_f32 v12, v12, v%d" % (U + 2 * k))
        e("v_add_f32 v12, v12, v%d" % (U + 2 * k + 1))
    allreduce_ror("v_add_f32", [12, 13])
    allreduce_rows("v_add_f32", [12, 13], 14)
    e("v_mul_f32 v12, 0x3b000000, v12")
    e("v_mov_b32 v11, 0")
    for k in range(32):
        e("v_sub_f32 v14, v%d, v12" % (U + k))
        e("v_fmac_f32 v11, v14, v14")
    allreduce_ror("v_add_f32", [11])
    allreduce_rows("v_add_f32", [11], 14)
    e("v_mul_f32 v11, 0x3b000000, v11")
    rbf(12, 12, 14)
    rbf(11, 11, 14)
    e("v_add_f32 v11, 0x3727c5ac, v11")
    rbf(11, 11, 14)
    e("v_sqrt_f32 v11, v11")
    nop(1)
    rbf(11, 11, 14)
    e("v_rcp_f32 v9, v11")
    rbf(13, 13, 14)
    e("v_mul_f32 v13, 0xbfb8aa3b, v13")
    e("v_exp_f32 v13, v13")
    nop(1)
    e("v_add_f32 v13, 1.0, v13")
    e("v_rcp_f32 v13, v13")
    nop(1)
    rbf(vGATE, 13, 14)
    for k in range(8):
        x = XM + k
        e("v_lshlrev_b32 v14, 16, v%d" % x)
        e("v_and_b32 v15, 0xffff0000, v%d" % x)
        e("v_sub_f32 v14, v14, v12")
        e("v_sub_f32 v15, v15, v12")
        e("v_cvt_pk_bf16_f32 v14, v14, v15")
        e("v_and_b32 v15, 0xffff0000, v14")
        e("v_lshlrev_b32 v14, 16, v14")
        e("v_mul_f32 v6, v14, v9")
        e("v_mul_f32 v7, v15, v9")
        e("v_fma_f32 v14, -v6, v11, v14")
        e("v_fma_f32 v15, -v7, v11, v15")
        e("v_fma_f32 v6, v14, v9, v6")
        e("v_fma_f32 v7, v15, v9, v7")
        e("v_cvt_pk_bf16_f32 v%d, v6, v7" % x)
    e("v_mov_b32 v10, v%d" % vTA)
    e("s_cmp_ge_u32 s%d, 28" % sJ)
    e("s_cbranch_scc1 L_hdone")
    for kk in range(2):
        e("ds_read_b64_tr_b16 %s, v10 offset:%d" % (vr(BF + 16 + 4 * kk, 2), W1 + kk * 4096))
        e("ds_read_b64_tr_b16 %s, v10 offset:%d" % (vr(BF + 16 + 4 * kk + 2, 2), W1 + kk * 4096 + 512))
    e("s_waitcnt lgkmcnt(0)")
    for kk in range(2):
        mfma(T0, XM + 4 * kk, BF + 16 + 4 * kk, kk == 0)
    nop(8)
    select_g(T0 + 4, T0)
    e("buffer_store_dwordx2 %s, v%d, %s, s31 offen sc1" % (vr(T0 + 4, 2), vHP, sr(SWS, 4)))
    e("L_hdone:")
    stamp()
    e("v_xor_b32 v6, v%d, v%d" % (vN, vG))
    e("v_lshlrev_b32 v6, 4, v6")
    e("v_lshl_add_u32 v6, v%d, 8, v6" % vN)
    e("s_lshl_b32 s17, s%d, 13" % sW)
    e("s_add_u32 s17, s17, %d" % KK)
    e("v_add_u32 v6, s17, v6")
    e("v_lshrrev_b32 v8, 2, v%d" % vLANE)
    e("v_and_b32 v9, 7, v8")
    e("v_lshlrev_b32 v9, 5, v9")
    e("v_lshl_add_u32 v9, v8, 8, v9")
    e("v_lshl_add_u32 v9, v%d, 3, v9" % vB4)
    e("s_lshl_b32 s17, s%d, 13" % sW)
    e("s_add_u32 s17, s17, %d" % VV)
    e("v_add_u32 v9, s17, v9")
    e("s_mov_b32 s%d, 0" % sCNT)
    QG = G0
    def p1_issue():
        for r in range(4):
            e("buffer_load_dwordx4 %s, v%d, %s, s%d offen sc1" % (vr(QG + 4 * r, 4), vT16, sr(SWS, 4), 26 + r))
        e("s_waitcnt vmcnt(0)")
    p1_issue()
    for kk in range(4):
        if kk: e("v_xor_b32 v7, %d, v6" % (64 * kk))
        for t in range(2):
            e("ds_read_b128 %s, v%d offset:%d" % (vr(KF + 16 * t + 4 * kk, 4), 7 if kk else 6, 4096 * t))
    for u in range(8):
        if u: e("v_xor_b32 v7, %d, v9" % (u << 5))
        e("ds_read_b64_tr_b16 %s, v%d" % (vr(VF + 4 * u, 2), 7 if u else 9))
        e("ds_read_b64_tr_b16 %s, v%d offset:4096" % (vr(VF + 4 * u + 2, 2), 7 if u else 9))
    tagtest([QG + 2 * k + 1 for k in range(8)], 10, 11)
    e("s_cbranch_vccz L_p1d")
    e("L_p1:")
    p1_issue()
    tagtest([QG + 2 * k + 1 for k in range(8)], 10, 11)
    loopctl("L_p1", "L_p1d")
    e("v_add_f32 v10, v%d, v%d" % (QG, QG + 4))
    e("v_add_f32 v11, v%d, v%d" % (QG + 2, QG + 6))
    e("v_add_f32 v12, v%d, v%d" % (QG + 8, QG + 12))
    e("v_add_f32 v13, v%d, v%d" % (QG + 10, QG + 14))
    e("v_add_f32 v10, v10, v12")
    e("v_add_f32 v11, v11, v13")
    e("v_cvt_pk_bf16_f32 v10, v10, v11")
    e("v_lshlrev_b32 v11, 2, v0")
    e("v_add_u32 v11, %d, v11" % QL)
    e("ds_write_b32 v11, v10")
    e("v_lshlrev_b32 v12, 8, v%d" % vB4)
    e("v_lshl_add_u32 v12, v%d, 4, v12" % vG)
    e("v_add_u32 v12, %d, v12" % QL)
    e("s_waitcnt lgkmcnt(0)")
    e("s_barrier")
    stamp("s%d" % sCNT)
    for kk in range(4):
        e("ds_read_b128 %s, v12 offset:%d" % (vr(QF + 4 * kk, 4), 64 * kk))
    e("v_lshlrev_b32 v7, 1, v%d" % vG)
    e("v_xor_b32 v5, v%d, v7" % vN)
    e("v_xor_b32 v6, 8, v5")
    e("s_and_b32 s14, s%d, 1" % sW)
    e("s_lshl_b32 s14, s14, 3")
    e("v_xor_b32 v7, s14, v5")
    e("v_lshlrev_b32 v5, 4, v5")
    e("v_lshlrev_b32 v6, 4, v6")
    e("v_lshlrev_b32 v7, 4, v7")
    e("v_lshl_add_u32 v5, v%d, 10, v5" % vG)
    e("v_lshl_add_u32 v6, v%d, 10, v6" % vG)
    e("v_lshl_add_u32 v7, v%d, 10, v7" % vG)
    e("s_lshl_b32 s15, s%d, 8" % sCB)
    e("s_lshl_b32 s16, s%d, 16" % sRB)
    e("s_add_u32 s16, s16, s15")
    e("s_lshl_b32 s17, s%d, 14" % sW)
    e("s_add_u32 s16, s16, s17")
    e("s_lshl_b32 s18, s%d, 12" % sW)
    e("s_add_u32 s18, s18, %d" % WO)
    e("s_mul_i32 s19, s%d, %d" % (sRB, 28 * 1024))
    e("s_add_u32 s19, s19, s15")
    e("s_lshl_b32 s17, s%d, 13" % sW)
    e("s_add_u32 s19, s19, s17")
    e("s_lshl_b32 s17, s%d, 11" % sW)
    e("s_add_u32 s17, s17, %d" % W2)
    for t in range(4):
        dma(SWO, 5 + (t >> 1), 16, 18)
        if t < 3:
            e("s_add_u32 s16, s16, 4096")
            e("s_add_u32 s18, s18, 1024")
    for t in range(2):
        dma(SW2, 7, 19, 17)
        if t < 1:
            e("s_add_u32 s19, s19, 4096")
            e("s_add_u32 s17, s17, 1024")
    e("s_waitcnt lgkmcnt(0)")
    S = T0
    for t in range(2):
        for kk in range(4):
            mfma(S + 4 * t, KF + 16 * t + 4 * kk, QF + 4 * kk, kk == 0)
    nop(8)
    for k in range(0, 8, 2):
        e("v_cvt_pk_bf16_f32 v14, v%d, v%d" % (S + k, S + k + 1))
        e("v_and_b32 v15, 0xffff0000, v14")
        e("v_lshlrev_b32 v14, 16, v14")
        e("v_mul_f32 v14, 0x3db504f3, v14")
        e("v_mul_f32 v15, 0x3db504f3, v15")
        e("v_cvt_pk_bf16_f32 v14, v14, v15")
        e("v_and_b32 v15, 0xffff0000, v14")
        e("v_lshlrev_b32 v14, 16, v14")
        e("v_mul_f32 v%d, 0x3fb8aa3b, v14" % (S + k))
        e("v_mul_f32 v%d, 0x3fb8aa3b, v15" % (S + k + 1))
    e("v_max3_f32 v12, v%d, v%d, v%d" % (S, S + 1, S + 2))
    e("v_max3_f32 v12, v12, v%d, v%d" % (S + 3, S + 4))
    e("v_max3_f32 v12, v12, v%d, v%d" % (S + 5, S + 6))
    e("v_max_f32 v12, v12, v%d" % (S + 7))
    allreduce_rows("v_max_f32", [12], 14)
    for k in range(8):
        e("v_sub_f32 v%d, v%d, v12" % (S + k, S + k))
    for k in range(8):
        e("v_exp_f32 v%d, v%d" % (S + k, S + k))
    P = T0 + 8
    nop(1)
    for k in range(4):
        e("v_cvt_pk_bf16_f32 v%d, v%d, v%d" % (P + k, S + 2 * k, S + 2 * k + 1))
    e("v_add_f32 v13, v%d, v%d" % (S, S + 1))
    nop(1)
    OACC = G0
    for u in range(8):
        e("v_mfma_f32_16x16x32_bf16 %s, %s, %s, 0" % (vr(OACC + 4 * u, 4), vr(VF + 4 * u, 4), vr(P, 4)))
    for k in range(2, 8):
        e("v_add_f32 v13, v13, v%d" % (S + k))
    allreduce_rows("v_add_f32", [13], 14)
    e("s_lshl_b32 s13, s%d, 11" % sW)
    e("s_add_u32 s13, s13, %d" % OBUF)
    e("v_lshlrev_b32 v5, 9, v%d" % vB4)
    e("v_lshl_add_u32 v5, v%d, 4, v5" % vG)
    e("v_add_u32 v5, s13, v5")
    e("s_lshl_b32 s13, s%d, 5" % sW)
    e("s_add_u32 s13, s13, %d" % OST)
    e("v_lshlrev_b32 v6, 3, v%d" % vB4)
    e("v_add_u32 v6, s13, v6")
    e("ds_write_b64 v6, v[12:13]")
    for u in range(8):
        e("ds_write_b128 v5, %s offset:%d" % (vr(OACC + 4 * u, 4), 64 * u))
    e("s_lshl_b32 s13, s%d, 9" % sW)
    e("s_add_u32 s13, s13, %d" % OBUF)
    e("v_lshlrev_b32 v5, 3, v%d" % vLANE)
    e("v_add_u32 v5, s13, v5")
    e("s_lshl_b32 s13, s%d, 3" % sW)
    e("s_add_u32 s13, s13, %d" % OST)
    e("v_mov_b32 v6, s13")
    e("s_waitcnt lgkmcnt(0)")
    e("s_barrier")
    for w in range(4):
        e("ds_read_b64 %s, v6 offset:%d" % (vr(T0 + 8 + 2 * w, 2), 32 * w))
    for w in range(4):
        e("ds_read_b64 %s, v5 offset:%d" % (vr(T0 + 2 * w, 2), 2048 * w))
    R = T0 + 16
    e("v_mov_b32 v%d, s%d" % (R + 1, sT))
    e("v_mov_b32 v%d, s%d" % (R + 3, sT))
    e("v_mov_b32 v%d, s%d" % (R + 5, sT))
    e("v_mov_b32 v%d, s%d" % (R + 7, sT))
    e("s_waitcnt lgkmcnt(4)")
    M = T0 + 8
    e("v_max3_f32 v%d, v%d, v%d, v%d" % (R + 4, M, M + 2, M + 4))
    e("v_max_f32 v%d, v%d, v%d" % (R + 4, R + 4, M + 6))
    for w in range(4):
        e("v_sub_f32 v%d, v%d, v%d" % (M + 2 * w, M + 2 * w, R + 4))
    for w in range(4):
        e("v_exp_f32 v%d, v%d" % (M + 2 * w, M + 2 * w))
    e("s_waitcnt lgkmcnt(0)")
    e("v_mul_f32 v%d, v%d, v%d" % (R, M, T0))
    e("v_mul_f32 v%d, v%d, v%d" % (R + 2, M, T0 + 1))
    e("v_mul_f32 v%d, v%d, v%d" % (R + 6, M, M + 1))
    for w in range(1, 4):
        e("v_fmac_f32 v%d, v%d, v%d" % (R, M + 2 * w, T0 + 2 * w))
        e("v_fmac_f32 v%d, v%d, v%d" % (R + 2, M + 2 * w, T0 + 2 * w + 1))
        e("v_fmac_f32 v%d, v%d, v%d" % (R + 6, M + 2 * w, M + 2 * w + 1))
    e("buffer_store_dwordx4 %s, v%d, %s, s32 offen sc1" % (vr(R, 4), vL16, sr(SWS, 4)))
    e("buffer_store_dwordx4 %s, v%d, %s, s33 offen sc1" % (vr(R + 4, 4), vZ, sr(SWS, 4)))
    stamp()
    if int(os.environ.get("DELAY2", "0")):
        for _ in range(12): e("s_sleep 32")
        stamp()
    e("v_cmp_lt_u32 s[40:41], 27, v%d" % vLANE)
    OG, ST, HG = G0, G0 + 16, G0 + 48
    e("s_mov_b32 s%d, 0" % sCNT)
    e("v_lshlrev_b32 v5, 1, v%d" % vLANE)
    e("L_ph:")
    for m in range(8):
        e("s_add_u32 s18, s36, %d" % (65536 * m))
        e("buffer_load_dwordx2 %s, v%d, %s, s18 offen sc1" % (vr(HG + 2 * m, 2), vL8, sr(SWS, 4)))
    e("v_mov_b32 v9, s%d" % sT)
    e("s_waitcnt vmcnt(0)")
    for m in range(8):
        e("v_cndmask_b32 v%d, v%d, v9, s[40:41]" % (HG + 2 * m + 1, HG + 2 * m + 1))
    tagtest([HG + 2 * k + 1 for k in range(8)], 9, 10)
    loopctl("L_ph", "L_phd")
    def o_issue():
        for sp in range(8):
            e("s_add_u32 s18, s34, %d" % (4096 * sp))
            e("buffer_load_dwordx2 %s, v%d, %s, s18 offen sc1" % (vr(OG + 2 * sp, 2), vL8, sr(SWS, 4)))
        e("buffer_load_dwordx4 %s, v11, %s, s35 offen sc1" % (vr(ST, 4), sr(SWS, 4)))
    e("v_and_b32 v11, 7, v%d" % vLANE)
    e("v_lshlrev_b32 v11, 4, v11")
    o_issue()
    e("v_add_f32 v8, v%d, v%d" % (HG, HG + 2))
    for m in range(2, 8):
        e("v_add_f32 v8, v8, v%d" % (HG + 2 * m))
    rbf(8, 8, 9)
    e("v_lshlrev_b32 v9, 16, v%d" % vB1)
    e("v_add_f32 v8, v8, v9")
    rbf(8, 8, 9)
    e("v_mul_f32 v9, v8, v8")
    e("v_mul_f32 v9, 0x3d372713, v9")
    e("v_fma_f32 v9, v9, v8, v8")
    e("v_mul_f32 v9, 0x40135761, v9")
    e("v_exp_f32 v9, v9")
    nop(1)
    e("v_add_f32 v9, 1.0, v9")
    e("v_rcp_f32 v9, v9")
    nop(1)
    e("v_fma_f32 v8, -v8, v9, v8")
    e("v_cvt_pk_bf16_f32 v8, v8, v8")
    e("v_cndmask_b32 v8, v8, 0, s[40:41]")
    e("s_lshl_b32 s13, s%d, 6" % sW)
    e("s_add_u32 s13, s13, %d" % HAL)
    e("v_add_u32 v6, s13, v5")
    e("s_mov_b64 exec, 0xffffffff")
    e("ds_write_b16 v6, v8")
    e("s_mov_b64 exec, -1")
    e("s_mov_b32 s%d, 0" % sCNT)
    otags = [OG + 2 * sp + 1 for sp in range(8)] + [ST + 1, ST + 3]
    e("s_waitcnt vmcnt(0)")
    tagtest(otags, 9, 10)
    e("s_cbranch_vccz L_p2d")
    e("L_p2:")
    o_issue()
    e("s_waitcnt vmcnt(0)")
    tagtest(otags, 9, 10)
    loopctl("L_p2", "L_p2d")
    stamp("s%d" % sCNT)
    e("v_mov_b32 v12, v%d" % ST)
    for m in ("quad_perm:[1,0,3,2]", "quad_perm:[2,3,0,1]", "row_half_mirror"):
        nop(2)
        e("v_max_f32_dpp v12, v12, v12 %s row_mask:0xf bank_mask:0xf" % m)
    e("v_sub_f32 v12, v%d, v12" % ST)
    e("v_exp_f32 v12, v12")
    nop(1)
    e("v_mul_f32 v13, v12, v%d" % (ST + 2))
    for k in range(8):
        e("v_readlane_b32 s%d, v12, %d" % (92 + k if not DBG else 60 + k, k))
    for m in ("quad_perm:[1,0,3,2]", "quad_perm:[2,3,0,1]", "row_half_mirror"):
        nop(2)
        e("v_add_f32_dpp v13, v13, v13 %s row_mask:0xf bank_mask:0xf" % m)
    wb = 92 if not DBG else 60
    e("v_mul_f32 v14, s%d, v%d" % (wb, OG))
    for sp in range(1, 8):
        e("v_fmac_f32 v14, s%d, v%d" % (wb + sp, OG + 2 * sp))
    e("v_rcp_f32 v15, v13")
    nop(1)
    e("v_mul_f32 v12, v14, v15")
    e("v_fma_f32 v14, -v12, v13, v14")
    e("v_fma_f32 v12, v14, v15, v12")
    e("v_cvt_pk_bf16_f32 v12, v12, v12")
    e("s_lshl_b32 s13, s%d, 7" % sW)
    e("s_add_u32 s13, s13, %d" % OA)
    e("v_add_u32 v6, s13, v5")
    e("ds_write_b16 v6, v12")
    e("v_lshlrev_b32 v5, 7, v%d" % vB4)
    e("v_lshl_add_u32 v5, v%d, 4, v5" % vG)
    e("v_add_u32 v5, %d, v5" % OA)
    e("v_lshlrev_b32 v6, 6, v%d" % vB4)
    e("v_lshl_add_u32 v6, v%d, 4, v6" % vG)
    e("v_add_u32 v6, %d, v6" % HAL)
    e("v_lshl_add_u32 v8, v%d, 3, v%d" % (vG, vR))
    e("v_lshlrev_b32 v8, 8, v8")
    e("v_lshl_add_u32 v8, v%d, 3, v8" % vB4)
    e("v_and_b32 v9, 1, v%d" % vG)
    e("v_lshl_or_b32 v9, v9, 2, v%d" % vR)
    e("s_lshl_b32 s13, s%d, 1" % sW)
    e("v_xor_b32 v9, s13, v9")
    e("v_lshl_add_u32 v8, v9, 5, v8")
    e("v_add_u32 v8, %d, v8" % WO)
    e("v_xor_b32 v9, 32, v8")
    e("s_waitcnt lgkmcnt(0)")
    e("s_barrier")
    HA = T0; AO = T0 + 4
    e("ds_read_b128 %s, v5" % vr(AO, 4))
    e("ds_read_b128 %s, v5 offset:64" % vr(AO + 4, 4))
    e("ds_read_b128 %s, v6" % vr(HA, 4))
    BO = G0; BM = G0 + 16
    for ct in range(2):
        for kk in range(2):
            e("ds_read_b64_tr_b16 %s, v%d offset:%d" % (vr(BO + 8 * ct + 4 * kk, 2), 8 + ct, kk * 8192))
            e("ds_read_b64_tr_b16 %s, v%d offset:%d" % (vr(BO + 8 * ct + 4 * kk + 2, 2), 8 + ct, kk * 8192 + 1024))
        e("ds_read_b64_tr_b16 %s, v%d offset:%d" % (vr(BM + 4 * ct, 2), 8 + ct, W2 - WO))
        e("ds_read_b64_tr_b16 %s, v%d offset:%d" % (vr(BM + 4 * ct + 2, 2), 8 + ct, W2 - WO + 1024))
    RR = G0 + 40
    for k in (1, 3, 5, 7):
        e("v_mov_b32 v%d, s%d" % (RR + k, sT))
    e("s_waitcnt lgkmcnt(0)")
    DA = G0 + 24; DM = G0 + 32
    for ct in range(2):
        for kk in range(2):
            mfma(DA + 4 * ct, AO + 4 * kk, BO + 8 * ct + 4 * kk, kk == 0)
        mfma(DM + 4 * ct, HA, BM + 4 * ct, True)
    nop(5)
    for ct in range(2):
        select_g(RR + 4 * ct, DA + 4 * ct)
        if ct == 1: nop(1)
        select_g(RR + 4 * ct + 2, DM + 4 * ct)
        e("buffer_store_dwordx4 %s, v%d, %s, s%d offen sc1" % (vr(RR + 4 * ct, 4), vPP, sr(SWS, 4), 37 + ct))
    stamp()
    if int(os.environ.get("DELAY2", "0")):
        for _ in range(12): e("s_sleep 32")
        stamp()
    e("s_lshl_b32 s15, s%d, 6" % sW)
    e("s_add_u32 s15, s15, %d" % FR)
    e("v_lshlrev_b32 v6, 4, v%d" % vB4)
    e("v_add_u32 v6, s15, v6")
    F = G0
    e("s_mov_b32 s%d, 0" % sCNT)
    e("L_p3:")
    e("buffer_load_dwordx4 %s, v%d, %s, s39 offen sc1" % (vr(F, 4), vL32, sr(SWS, 4)))
    e("buffer_load_dwordx4 %s, v%d, %s, s39 offen offset:16 sc1" % (vr(F + 4, 4), vL32, sr(SWS, 4)))
    e("s_waitcnt vmcnt(0)")
    tagtest([F + 1, F + 3, F + 5, F + 7], 9, 10)
    loopctl("L_p3", "L_p3d")
    stamp("s%d" % sCNT)
    e("v_mov_b32 v%d, v%d" % (F + 1, F + 2))
    e("v_mov_b32 v%d, v%d" % (F + 2, F + 4))
    e("v_mov_b32 v%d, v%d" % (F + 3, F + 6))
    vs = [F, F + 1, F + 2, F + 3]
    allreduce_ror("v_add_f32", vs)
    allreduce_rows("v_add_f32", vs, F + 8)
    e("ds_write_b128 v6, %s" % vr(F, 4))
    e("s_waitcnt lgkmcnt(0)")
    e("s_barrier")
    e("s_cmp_lg_u32 s%d, 0" % sW)
    e("s_cbranch_scc1 L_end")
    e("v_and_b32 v5, 7, v%d" % vLANE)
    e("v_lshlrev_b32 v5, 3, v5")
    e("v_add_u32 v5, %d, v5" % FR)
    for w in range(4):
        e("ds_read_b64 %s, v5 offset:%d" % (vr(F + 2 * w, 2), 64 * w))
    e("s_lshl_b32 s13, s%d, 8" % sCB)
    e("s_lshl_b32 s14, s%d, 2" % sRB)
    e("s_add_u32 s13, s13, s14")
    e("v_and_b32 v6, 1, v%d" % vR)
    e("v_lshlrev_b32 v6, 1, v6")
    e("v_lshl_add_u32 v6, v%d, 10, v6" % vB4)
    e("v_sub_f32 v12, 1.0, v%d" % vGATE)
    rbf(12, 12, 15)
    e("v_lshlrev_b32 v11, 16, v%d" % vB2)
    e("s_waitcnt lgkmcnt(0)")
    e("v_add_f32 v13, v%d, v%d" % (F, F + 2))
    e("v_add_f32 v14, v%d, v%d" % (F + 1, F + 3))
    e("v_add_f32 v13, v13, v%d" % (F + 4))
    e("v_add_f32 v14, v14, v%d" % (F + 5))
    e("v_add_f32 v13, v13, v%d" % (F + 6))
    e("v_add_f32 v14, v14, v%d" % (F + 7))
    rbf(13, 13, 15)
    rbf(14, 14, 15)
    e("v_add_f32 v14, v14, v11")
    rbf(14, 14, 15)
    e("v_mul_f32 v13, v%d, v13" % vGATE)
    rbf(13, 13, 15)
    e("v_mul_f32 v14, v12, v14")
    rbf(14, 14, 15)
    e("v_add_f32 v13, v13, v14")
    e("v_cvt_pk_bf16_f32 v13, v13, v13")
    e("s_mov_b64 exec, 0xff")
    e("buffer_store_short v13, v6, %s, s13 offen" % sr(SOUT, 4))
    e("s_mov_b64 exec, -1")
    stamp()
    e("s_cmp_lg_u32 s2, 0")
    e("s_cbranch_scc1 L_end")
    e("v_mov_b32 v5, 0")
    e("v_mov_b32 v6, s%d" % sT)
    e("buffer_store_dword v6, v5, %s, 0 offen" % sr(SWS, 4))
    if DBG:
        e("s_memrealtime s[16:17]")
        e("s_memtime s[18:19]")
        e("s_waitcnt lgkmcnt(0)")
        e("s_sub_u32 s16, s16, s92")
        e("s_sub_u32 s18, s18, s94")
        e("v_mov_b32 v6, s16")
        e("v_mov_b32 v7, s18")
        e("buffer_store_dwordx2 v[6:7], v5, s[96:99], 0 offen")
    e("L_end:")
    e("s_endpgm")

body()
text = HEADER + "; @launch grid=(256,1,1) block=(256,1,1) lds=%d\n" % LDS_BYTES
text += """.amdgcn_target "amdgcn-amd-amdhsa--gfx950"
.text
.globl {n}_kernel
.p2align 8
.type {n}_kernel,@function
{n}_kernel:
""".format(n=NAME)
text += "\n".join(out) + "\n"
text += """.section .rodata,"a"
.p2align 6
.amdhsa_kernel {n}_kernel
  .amdhsa_next_free_vgpr 256
  .amdhsa_next_free_sgpr 102
  .amdhsa_accum_offset 256
  .amdhsa_group_segment_fixed_size 0
  .amdhsa_kernarg_size 112
  .amdhsa_user_sgpr_count 2
  .amdhsa_user_sgpr_kernarg_segment_ptr 1
  .amdhsa_system_sgpr_workgroup_id_x 1
  .amdhsa_float_denorm_mode_32 3
.end_amdhsa_kernel
""".format(n=NAME)
path = sys.argv[1] if len(sys.argv) > 1 else "cdna_kernels/%s.s" % NAME
open(path, "w").write(text)
print("wrote", path, len(out), "lines")
```
